```python
import torch

def _softmax(x, axis=-1):
    return torch.softmax(x, dim=axis)
def _gelu(x):
    return torch.nn.functional.gelu(x, approximate="tanh")
def _silu(x):
    return torch.nn.functional.silu(x)
def _sigmoid(x):
    return torch.sigmoid(x)
def _layernorm(x, axis=-1, eps=1e-5):
    m = x.mean(dim=axis, keepdim=True)
    v = x.var(dim=axis, keepdim=True, unbiased=False)
    return (x - m) / torch.sqrt(v + eps)
def _scatter_add(tgt, idx, src, axis=0):
    return tgt.clone().index_add_(axis, idx, src)
def _segment_sum(src, seg, n):
    out = torch.zeros((n,) + src.shape[1:], dtype=src.dtype)
    return out.index_add_(0, seg, src)
def _pad(x, pw):
    flat = tuple(v for pair in reversed(pw) for v in pair)
    return torch.nn.functional.pad(x, flat)

kernel_name = 'parallel_sum__softmax_full_mha__moe_arch_mod__prompt'

def setup_inputs():

    _w = (lambda a: (lambda t: t.to(torch.bfloat16) if t.is_floating_point() else t)(torch.as_tensor(a)))
    def _A_setup():
        B, S, D = 1, 2048, 640
        return {
            "x": _w((lambda *s: torch.randn(*s, dtype=torch.bfloat16) * 0.05)(B, S, D)),
            "wqkv": _w((lambda *s: torch.randn(*s, dtype=torch.bfloat16) * 0.2)(D, 3 * D)),
            "wo": _w((lambda *s: torch.randn(*s, dtype=torch.bfloat16) * 0.2)(D, D)),
        }
    _A_in = _A_setup()

    def _B_setup():
        B, S, D, F, C = 1, 2048, 640, 1728, 2
        return {
            "x": _w((lambda *s: torch.randn(*s, dtype=torch.bfloat16) * 0.05)(B, S, D)),
            "w_r": _w((lambda *s: torch.randn(*s, dtype=torch.bfloat16) * 0.8)(D)),
            "w_gate": _w((lambda *s: torch.randn(*s, dtype=torch.bfloat16) * 0.2)(D, F)),
            "w_up": _w((lambda *s: torch.randn(*s, dtype=torch.bfloat16) * 0.2)(D, F)),
            "w_down": _w((lambda *s: torch.randn(*s, dtype=torch.bfloat16) * 0.2)(F, D)),
        }
    _B_in = _B_setup()

    return {
        "A_x": _A_in["x"],
        "A_wqkv": _A_in["wqkv"],
        "A_wo": _A_in["wo"],
        "B_x": _B_in["x"],
        "B_w_r": _B_in["w_r"],
        "B_w_gate": _B_in["w_gate"],
        "B_w_up": _B_in["w_up"],
        "B_w_down": _B_in["w_down"],
    }

def reference(A_x, A_wqkv, A_wo, B_x, B_w_r, B_w_gate, B_w_up, B_w_down):
    def _A_ref(x, wqkv, wo):
        B, S, D = x.shape
        H = 32; Dh = D // H
        qkv = (lambda x, *d: x.permute(*d))((x @ wqkv).reshape(B, S, 3, H, Dh), 2, 0, 3, 1, 4)
        q, k, v = qkv[0], qkv[1], qkv[2]
        scale = Dh ** -0.5
        scores = torch.einsum("bhqd,bhkd->bhqk", q, k) * scale
        p = _softmax(scores, axis=-1)
        o = torch.einsum("bhqk,bhkd->bhqd", p, v)
        return (lambda x, *d: x.permute(*d))(o, 0, 2, 1, 3).reshape(B, S, D) @ wo

    def _B_ref(x, w_r, w_gate, w_up, w_down):
        B, S, D = x.shape
        C = 2
        r = x @ w_r
        idx = torch.argsort(-r, axis=-1)[:, :C]
        idx_e = (lambda x, n, axis: torch.repeat_interleave(x, n, dim=axis))(idx.reshape(B, C, 1), D, axis=2)
        x_sel = (lambda x, i, axis: torch.take_along_dim(x, i, dim=axis))(x, idx_e, axis=1)
        g = _silu(x_sel @ w_gate)
        u = x_sel @ w_up
        y = (g * u) @ w_down
        r_sel = _sigmoid((lambda x, i, axis: torch.take_along_dim(x, i, dim=axis))(r, idx, axis=1))
        y = y * r_sel.reshape(B, C, 1)
        b_off = (torch.arange(B) * S).reshape(B, 1)
        flat_idx = (idx + b_off).reshape(B * C)
        zero = (x * 0.0).reshape(B * S, D)
        upd = _scatter_add(zero, flat_idx, y.reshape(B * C, D), axis=0)
        return x + upd.reshape(B, S, D)

    x = A_x
    xn = _layernorm(x, axis=-1)
    return x + _A_ref(xn, A_wqkv, A_wo) + _B_ref(xn, B_w_r, B_w_gate, B_w_up, B_w_down)
```

```python
import re

class I:
    __slots__ = ("text", "kind", "rd", "wr", "srcc", "passes", "ws", "srd", "swr", "note")
    def __init__(self, text, kind, rd=(), wr=(), srcc=(), passes=0, ws=1, srd=(), swr=()):
        self.text = text; self.kind = kind
        self.rd = frozenset(rd); self.wr = frozenset(wr); self.srcc = frozenset(srcc)
        self.passes = passes; self.ws = ws
        self.srd = frozenset(srd); self.swr = frozenset(swr)

def vr(a, n=1):
    return list(range(a, a + n))
def V(a, n=1):
    return "v%d" % a if n == 1 else "v[%d:%d]" % (a, a + n - 1)
def S(a, n=1):
    return "s%d" % a if n == 1 else "s[%d:%d]" % (a, a + n - 1)

_vre = re.compile(r"\bv(\d+)\b|\bv\[(\d+):(\d+)\]")
def vregs_of(op):
    out = []
    for m in _vre.finditer(op):
        if m.group(1) is not None: out.append(int(m.group(1)))
        else: out += list(range(int(m.group(2)), int(m.group(3)) + 1))
    return out
_sre = re.compile(r"\bs(\d+)\b|\bs\[(\d+):(\d+)\]|\b(vcc)\b")
def sregs_of(op):
    out = []
    for m in _sre.finditer(op):
        if m.group(1) is not None: out.append(int(m.group(1)))
        elif m.group(4): out += [106, 107]
        else: out += list(range(int(m.group(2)), int(m.group(3)) + 1))
    return out

TRANS = ("v_exp_f32", "v_log_f32", "v_rcp_f32", "v_rsq_f32", "v_sqrt_f32", "v_sin_f32", "v_cos_f32", "v_exp_f16", "v_rcp_iflag_f32")
MFMA_PASSES = {"v_mfma_f32_32x32x16_bf16": 8, "v_mfma_f32_32x32x8_bf16": 8, "v_mfma_f32_16x16x32_bf16": 4,
               "v_mfma_f32_16x16x16_bf16": 4, "v_mfma_f32_4x4x4_16b_bf16": 2}

def parse(text):
    t = text.split(";")[0].strip()
    if not t or t.endswith(":") or t.startswith("."):
        return I(text, "label", ws=0)
    mn, _, rest = t.partition(" ")
    ops = [o.strip() for o in re.split(r",(?![^\[]*\])", rest)] if rest else []
    if mn == "s_nop":
        return I(text, "nop", ws=int(ops[0], 0) + 1)
    if mn in MFMA_PASSES:
        d, a, b, c = ops[:4]
        return I(text, "mfma", rd=vregs_of(a) + vregs_of(b), wr=vregs_of(d), srcc=vregs_of(c), passes=MFMA_PASSES[mn])
    if mn.startswith("buffer_load") or mn.startswith("global_load"):
        if " lds" in t:
            return I(text, "vmem", rd=vregs_of(ops[0]), srd=sregs_of(" ".join(ops[1:])))
        return I(text, "vmem", rd=sum((vregs_of(o) for o in ops[1:]), []), wr=vregs_of(ops[0]), srd=sregs_of(" ".join(ops[1:])))
    if mn.startswith("buffer_store") or mn.startswith("global_store") or mn.startswith("buffer_atomic") or mn.startswith("global_atomic"):
        k = "store4" if ("x4" in mn or "x3" in mn) else "store"
        return I(text, k, rd=sum((vregs_of(o) for o in ops), []), srd=sregs_of(" ".join(ops)))
    if mn.startswith("ds_read") or mn.startswith("ds_bpermute") or mn.startswith("ds_permute") or mn.startswith("ds_swizzle"):
        return I(text, "lds", rd=sum((vregs_of(o) for o in ops[1:]), []), wr=vregs_of(ops[0]))
    if mn.startswith("ds_"):
        return I(text, "lds", rd=sum((vregs_of(o) for o in ops), []))
    if mn.startswith("v_"):
        base = mn.replace("_e32", "").replace("_e64", "").replace("_sdwa", "").replace("_dpp", "")
        kind = "trans" if base in TRANS else "valu"
        if base.startswith("v_cmp"):
            return I(text, kind, rd=sum((vregs_of(o) for o in ops[1:]), []), swr=sregs_of(ops[0]), srd=sregs_of(" ".join(ops[1:])))
        if base in ("v_readfirstlane_b32", "v_readlane_b32"):
            return I(text, "readlane", rd=vregs_of(ops[1]), swr=sregs_of(ops[0]), srd=sregs_of(" ".join(ops[2:])))
        if base.startswith("v_permlane"):
            r = vregs_of(ops[0]) + vregs_of(ops[1])
            return I(text, "permlane", rd=r, wr=r)
        rd = sum((vregs_of(o) for o in ops[1:]), [])
        wr = vregs_of(ops[0])
        swr = []
        srcs = ops[1:]
        if base in ("v_add_co_u32", "v_addc_co_u32", "v_sub_co_u32", "v_subb_co_u32", "v_div_scale_f32", "v_mad_u64_u32"):
            swr = sregs_of(ops[1]); srcs = ops[2:]
        if base in ("v_fmac_f32", "v_dot2c_f32_bf16", "v_pk_fmac_f16") or "UNUSED_PRESERVE" in t or base.startswith("v_writelane"):
            rd = rd + wr
        if "dpp" in mn or "row_" in t or "quad_perm" in t:
            kind = "dpp"
        return I(text, kind, rd=rd, wr=wr, swr=swr, srd=sregs_of(" ".join(srcs)))
    if mn.startswith("s_"):
        return I(text, "salu")
    raise ValueError("cannot parse: " + text)

VALU_KINDS = ("valu", "trans", "dpp", "readlane", "permlane")

def need(p, c):
    n = 0
    ix = {2: 0, 4: 1, 8: 2, 16: 3}
    if p.kind in VALU_KINDS:
        if c.kind == "mfma" and p.wr & (c.rd | c.srcc): n = max(n, 2)
        if p.kind == "trans" and c.kind in VALU_KINDS and c.kind != "trans" and p.wr & c.rd: n = max(n, 1)
        if p.kind == "trans" and c.kind in ("mfma","store","store4","lds","vmem") and p.wr & (c.rd|c.srcc): n = max(n, 2 if c.kind=="mfma" else 1)
        if c.kind == "permlane" and p.wr & c.rd: n = max(n, 2)
        if c.kind == "dpp" and p.wr & c.rd: n = max(n, 2)
        if c.kind == "readlane" and p.wr & c.rd: n = max(n, 1)
        if p.swr:
            if c.kind in VALU_KINDS and p.swr & c.srd: n = max(n, 4 if c.kind == "readlane" else 2)
            if c.kind in ("vmem", "store", "store4") and p.swr & c.srd: n = max(n, 5)
    if p.kind == "mfma":
        k = ix[p.passes]
        if c.kind == "mfma":
            if p.wr & c.srcc:
                if p.wr == c.srcc and p.passes == c.passes: n = max(n, (2, 0, 0, 0)[k])
                else: n = max(n, (4, 6, 10, 18)[k])
            if p.wr & c.rd: n = max(n, (5, 8, 12, 20)[k])
            if p.wr & c.wr and not (p.wr & c.srcc):
                n = max(n, (5, 8, 12, 20)[k])
        elif c.kind in VALU_KINDS:
            if p.wr & (c.rd | c.wr): n = max(n, (5, 8, 12, 20)[k])
            if p.srcc & c.wr: n = max(n, (1, 3, 7, 15)[k])
        elif c.kind in ("vmem", "store", "store4", "lds"):
            if p.wr & (c.rd | c.wr): n = max(n, (5, 8, 12, 20)[k])
    if p.kind == "store4":
        if c.kind in VALU_KINDS and p.rd & c.wr: n = max(n, 2)
        elif c.kind in ("vmem", "lds", "mfma") and p.rd & c.wr: n = max(n, 1)
    return n

def check(seq, name="", window=24):
    ins = [parse(t) for t in seq]
    bad = []
    for j, c in enumerate(ins):
        if c.kind in ("label", "nop", "salu"): continue
        dist = 0
        for i in range(j - 1, -1, -1):
            p = ins[i]
            n = need(p, c)
            if n > dist:
                bad.append("%s: need %d have %d: [%s] -> [%s]" % (name, n, dist, p.text.strip(), c.text.strip()))
            dist += p.ws
            if dist > window: break
    return bad

def autonop(seq):
    out = []
    ins = []
    for t in seq:
        c = parse(t)
        if c.kind not in ("label", "nop", "salu"):
            dist = 0; req = 0
            for p in reversed(ins):
                n = need(p, c)
                if n - dist > req: req = n - dist
                dist += p.ws
                if dist > 24: break
            while req > 0:
                k = min(req, 16)
                nt = "    s_nop %d" % (k - 1)
                out.append(nt); ins.append(parse(nt)); req -= k
        out.append(t); ins.append(c)
    return out
```

```python
import struct, math
from asmlib import *

WS_KV = 0x0
KV_REC = 2560
KV_HEAD = 64 * KV_REC
WS_Q = 0x500000
WS_O = 0x780000
WS_XN = 0xA00000
WS_R = 0xC80000
WS_MOE = 0xC90000
WS_WO = 0xD00000
ROWB = 1280
TOK = 2048

def f32bits(x): return struct.unpack("<I", struct.pack("<f", x))[0]
def bf16bits(x):
    u = f32bits(x)
    assert (u & 0xffff) == 0, x
    return u >> 16
C1 = 0.2236328125
C2 = -2.4437904357910156e-05
L1 = 1.4453125
L2 = -0.00262451171875
SCALE32 = 0.22360679507255554
LOG2E = math.log2(math.e)
BIAS = 80.0

vK0o, vK1o, vVo = 1, 2, 3
vQ0, vQ1 = 4, 8
vAc1, vAc2, vAL1, vAL2 = 10, 12, 14, 16
vR1, vR2 = 18, 40
vCn = 20
vP = 24
vX = 32
vT = 42
vS = [48, 64]
vO = 80
vKV = [96, 112]
NVGPR = 128

sKV, sQ, sO = 4, 8, 12
sOffK, sOffV, sCnt = 16, 17, 20
sVm = 18
sT = 28

def mfma32(d, a, b, c): return "    v_mfma_f32_32x32x16_bf16 %s, %s, %s, %s" % (V(d, 16), V(a, 4), V(b, 4), c if isinstance(c, str) else V(c, 16))
def mfma328(d, a, b, c): return "    v_mfma_f32_32x32x8_bf16 %s, %s, %s, %s" % (V(d, 16), V(a, 2), V(b, 2), c if isinstance(c, str) else V(c, 16))
def mfma4(d, a, b, c): return "    v_mfma_f32_4x4x4_16b_bf16 %s, %s, %s, %s" % (V(d, 4), V(a, 2), V(b, 2), c if isinstance(c, str) else V(c, 4))
def cvt(d, a, b): return "    v_cvt_pk_bf16_f32 v%d, %s, %s" % (d, a if isinstance(a, str) else "v%d" % a, b if isinstance(b, str) else "v%d" % b)

def loadK(st, soff):
    b = vKV[st]
    return ["    buffer_load_dwordx4 %s, v%d, %s, s%d offen" % (V(b, 4), vK0o, S(sKV, 4), soff),
            "    buffer_load_dwordx2 %s, v%d, %s, s%d offen" % (V(b + 12, 2), vK1o, S(sKV, 4), soff)]
def loadV(st, soff):
    b = vKV[st]
    return ["    s_mov_b64 exec, %s" % S(sVm, 2),
            "    buffer_load_dwordx4 %s, v%d, %s, s%d offen" % (V(b + 4, 4), vVo, S(sKV, 4), soff),
            "    buffer_load_dwordx4 %s, v%d, %s, s%d offen offset:640" % (V(b + 8, 4), vVo, S(sKV, 4), soff),
            "    s_mov_b64 exec, -1"]
def QKa(par): return mfma32(vS[par], vKV[par], vQ0, "0")
def QKb(par): return mfma328(vS[par], vKV[par] + 12, vQ1, vS[par])
def PV(par, c): return mfma32(vO, vKV[par] + 4 + 4 * c, vP + 4 * c, vO)

def slot(par, k, parts="all"):
    def loc(dk):
        kk = k - dk
        p = par
        if kk < 0: kk += 4; p ^= 1
        return p, kk
    p0, k0 = par, k
    p1, k1 = loc(1)
    p2, k2 = loc(2)
    s0 = vS[p0] + 4 * k0
    s1 = vS[p1] + 4 * k1
    x1 = vX + 4 * (k1 & 1)
    x2 = vX + 4 * (k2 & 1)
    pp = vP + 2 * k2
    c1 = [cvt(vR1, s0, s0 + 1), cvt(vR1 + 1, s0 + 2, s0 + 3)]
    m1 = [mfma4(s0, vAc1, vR1, "0"), mfma4(s0, vAc2, vR1, s0)]
    c2 = [cvt(vR2, s1, s1 + 1), cvt(vR2 + 1, s1 + 2, s1 + 3)]
    m2 = [mfma4(x1, vAL1, vR2, vCn), mfma4(x1, vAL2, vR2, x1)]
    e = ["    v_exp_f32 v%d, v%d" % (x2 + i, x2 + i) for i in range(4)]
    c3 = [cvt(pp, x2, x2 + 1), cvt(pp + 1, x2 + 2, x2 + 3)]
    return c1, m1, c2, m2, e, c3

def tile_body(par):
    out = []
    for k in range(4):
        c1, m1, c2, m2, e, c3 = slot(par, k)
        if k == 0: big = ["    s_waitcnt vmcnt(6)", PV(par ^ 1, 0)]; post = []
        elif k == 1: big = ["    s_waitcnt vmcnt(4)", QKa(par ^ 1)]; post = []
        elif k == 2: big = [PV(par ^ 1, 1)]; post = loadV(par ^ 1, sOffV) + ["    s_add_u32 s%d, s%d, %d" % (sOffV, sOffV, KV_REC)]
        else: big = [QKb(par ^ 1)]; post = loadK(par ^ 1, sOffK) + ["    s_add_u32 s%d, s%d, %d" % (sOffK, sOffK, KV_REC)]
        out += c1 + big + c2 + post + [e[0], e[1], m1[0], m2[0], e[2], m1[1], m2[1], e[3]] + c3
    return out

def attn_code(nwaves=8, id_base=0, force_fallback=False, mimic1=True, mimic2=True, lab="A", stamp=False):
    assert nwaves == 8
    o = []
    a = o.append
    a("    s_load_dwordx2 s[22:23], s[0:1], 80          ; ws")
    a("    v_and_b32 v%d, 63, v0                      ; lane" % vT)
    a("    v_lshrrev_b32 v%d, 6, v0                   ; wave" % (vT + 1))
    a("    s_and_b32 s24, s2, 7")
    a("    s_lshr_b32 s25, s2, 3")
    a("    s_and_b32 s26, s25, 3")
    a("    s_lshl_b32 s24, s24, 2")
    a("    s_add_u32 s24, s24, s26                     ; head")
    a("    s_lshr_b32 s25, s25, 2")
    a("    v_readfirstlane_b32 s26, v%d" % (vT + 1))
    a("    s_lshl_b32 s25, s25, 3")
    a("    s_add_u32 s25, s25, s26")
    a("    s_mul_i32 s27, s24, %d" % KV_HEAD)
    a("    s_waitcnt lgkmcnt(0)")
    a("    s_add_u32 s%d, s22, s27" % sKV)
    a("    s_addc_u32 s%d, s23, 0" % (sKV + 1))
    a("    s_mov_b32 s%d, %d" % (sKV + 2, KV_HEAD))
    a("    s_mov_b32 s%d, 0x00020000" % (sKV + 3))
    a("    s_add_u32 s%d, s22, %d" % (sQ, WS_Q))
    a("    s_addc_u32 s%d, s23, 0" % (sQ + 1))
    a("    s_mov_b32 s%d, %d" % (sQ + 2, TOK * ROWB))
    a("    s_mov_b32 s%d, 0x00020000" % (sQ + 3))
    a("    s_add_u32 s%d, s22, %d" % (sO, WS_O))
    a("    s_addc_u32 s%d, s23, 0" % (sO + 1))
    a("    s_mov_b32 s%d, %d" % (sO + 2, TOK * ROWB))
    a("    s_mov_b32 s%d, 0x00020000" % (sO + 3))
    a("    v_and_b32 v%d, 31, v%d" % (vT + 2, vT))
    a("    v_lshrrev_b32 v%d, 5, v%d" % (vT + 3, vT))
    a("    v_lshlrev_b32 v%d, 4, v%d" % (vK0o, vT))
    a("    v_lshlrev_b32 v%d, 3, v%d" % (vK1o, vT + 2))
    a("    v_add_u32 v%d, 1024, v%d" % (vK1o, vK1o))
    a("    v_mul_u32_u24 v%d, 20, v%d" % (vVo, vT + 3))
    a("    v_add_u32 v%d, v%d, v%d" % (vVo, vVo, vT + 2))
    a("    v_lshlrev_b32 v%d, 4, v%d" % (vVo, vVo))
    a("    v_add_u32 v%d, 1280, v%d" % (vVo, vVo))
    a("    v_cmp_gt_u32 %s, 20, v%d" % (S(sVm, 2), vT + 2))
    a("    s_lshl_b32 s26, s25, 5")
    a("    v_add_u32 v%d, s26, v%d" % (vT + 4, vT + 2))
    a("    v_mul_u32_u24 v%d, 0x500, v%d" % (vT + 4, vT + 4))
    a("    s_mul_i32 s26, s24, 40")
    a("    v_add_u32 v%d, s26, v%d                    ; row base + head*40" % (vT + 4, vT + 4))
    a("    v_lshlrev_b32 v%d, 4, v%d" % (vT + 5, vT + 3))
    a("    v_add_u32 v%d, v%d, v%d" % (vT + 5, vT + 4, vT + 5))
    a("    buffer_load_dwordx4 %s, v%d, %s, 0 offen" % (V(vQ0, 4), vT + 5, S(sQ, 4)))
    a("    buffer_load_dwordx2 %s, v%d, %s, 0 offen offset:32" % (V(vQ1, 2), vT + 4, S(sQ, 4)))
    a("    s_mov_b32 s%d, 0" % sOffK)
    o += loadK(0, sOffK)
    a("    s_mov_b32 s%d, %d" % (sOffK, KV_REC))
    o += loadK(1, sOffK)
    a("    v_and_b32 v%d, 27, v%d" % (vX, vT + 2))
    a("    v_cmp_eq_u32 vcc, 24, v%d" % vX)
    a("    v_mov_b32 v%d, 0x3f803f80" % (vX + 1))
    a("    v_cndmask_b32 v%d, 0, v%d, vcc" % (vX + 1, vX + 1))
    for st in range(2):
        for r in range(8):
            a("    v_mov_b32 v%d, v%d" % (vKV[st] + 4 + r, vX + 1))
    a("    s_mov_b32 s%d, 0" % sOffV)
    o += loadV(0, sOffV)
    a("    s_mov_b32 s%d, %d" % (sOffV, KV_REC))
    a("    s_mov_b32 s%d, %d" % (sOffK, 2 * KV_REC))
    a("    v_and_b32 v%d, 1, v%d" % (vX, vT))
    a("    v_lshlrev_b32 v%d, 4, v%d                  ; shift 0/16" % (vX, vX))
    a("    v_and_b32 v%d, 2, v%d" % (vX + 1, vT))
    a("    v_cmp_eq_u32 vcc, 0, v%d" % (vX + 1))
    for reg, val in ((vAc1, C1), (vAc2, C2), (vAL1, L1), (vAL2, L2)):
        a("    v_mov_b32 v%d, 0x%x" % (vX + 2, bf16bits(val)))
        a("    v_lshlrev_b32 v%d, v%d, v%d" % (vX + 2, vX, vX + 2))
        a("    v_cndmask_b32 v%d, 0, v%d, vcc" % (reg, vX + 2))
        a("    v_cndmask_b32 v%d, v%d, 0, vcc" % (reg + 1, vX + 2))
    for r in range(16): a("    v_mov_b32 v%d, 0" % (vO + r))
    for r in range(8): a("    v_mov_b32 v%d, 0" % (vP + r))
    a("    v_cmp_eq_u32 vcc, 0, v%d" % (vT + 3))
    a("    s_waitcnt vmcnt(6)                          ; Q landed")
    a("    v_cndmask_b32 v%d, 0, v%d, vcc" % (vQ1, vQ1))
    a("    v_cndmask_b32 v%d, 0, v%d, vcc" % (vQ1 + 1, vQ1 + 1))
    if force_fallback:
        a("    s_branch L%s_fallback" % lab)
    a("    s_waitcnt vmcnt(4)                          ; K(0) landed")
    o.append(QKa(0)); o.append(QKb(0))
    o += loadK(0, sOffK)
    a("    s_add_u32 s%d, s%d, %d" % (sOffK, sOffK, KV_REC))
    for r in range(4): a("    v_mov_b32 v%d, 0xc4800000" % (vX + r))
    for r in range(4): a("    v_mov_b32 v%d, 0xf149f2ca" % (vS[1] + 12 + r))
    s = vS[0]
    a("    v_max3_f32 v%d, v%d, v%d, v%d" % (vT, s, s + 1, s + 2))
    for r in range(3, 15, 2):
        a("    v_max3_f32 v%d, v%d, v%d, v%d" % (vT, vT, s + r, s + r + 1))
    a("    v_max_f32 v%d, v%d, v%d" % (vT, vT, s + 15))
    a("    v_mov_b32 v%d, v%d" % (vT + 1, vT))
    a("    v_permlane32_swap_b32 v%d, v%d" % (vT, vT + 1))
    a("    v_max_f32 v%d, v%d, v%d" % (vT, vT, vT + 1))
    a("    s_mov_b32 s26, 0x%x" % f32bits(-SCALE32 * LOG2E))
    a("    v_mov_b32 v%d, 0x%x" % (vT + 1, f32bits(-BIAS)))
    a("    v_fma_f32 v%d, v%d, s26, v%d" % (vCn, vT, vT + 1))
    for r in range(1, 4): a("    v_mov_b32 v%d, v%d" % (vCn + r, vCn))
    a("    s_mov_b32 s%d, 32" % sCnt)
    if stamp:
        a("    s_memtime s[32:33]")
        a("    s_memrealtime s[34:35]")
        a("    s_waitcnt lgkmcnt(0)")
    pro = autonop(o)
    body = tile_body(0) + tile_body(1)
    tail = ["    s_sub_u32 s%d, s%d, 1" % (sCnt, sCnt), "    s_cmp_lg_u32 s%d, 0" % sCnt, "    s_cbranch_scc1 L%s_loop" % lab]
    bad = check(pro[-30:] + body + tail + body, "attn loop")
    assert not bad, "\n".join(bad)
    d = []
    c1, m1, c2, m2, e, c3 = slot(0, 0)
    d += ["    s_waitcnt vmcnt(0)", PV(1, 0)] + c2 + e + m2 + c3
    c1, m1, c2, m2, e, c3 = slot(0, 1)
    d += e + c3 + [PV(1, 1)]
    a = d.append
    a("    v_add_f32 v%d, |v%d|, |v%d|" % (vT, vO, vO + 1))
    for r in range(2, 8): a("    v_add_f32 v%d, v%d, |v%d|" % (vT, vT, vO + r))
    a("    v_add_f32 v%d, |v%d|, |v%d|" % (vT + 1, vO + 8, vO + 9))
    a("    v_add_f32 v%d, v%d, |v%d|" % (vT + 1, vT + 1, vO + 10))
    a("    v_add_f32 v%d, v%d, |v%d|" % (vT + 1, vT + 1, vO + 11))
    a("    v_add_f32 v%d, v%d, v%d" % (vT, vT, vT + 1))
    a("    v_add_f32 v%d, v%d, v%d" % (vT, vT, vO + 12))
    a("    v_mov_b32 v%d, 0x7f000000" % (vT + 1))
    a("    v_cmp_lt_f32 vcc, v%d, v%d                 ; finite (and not huge)" % (vT, vT + 1))
    a("    v_mov_b32 v%d, 0x03800000                  ; 2^-120" % (vT + 1))
    a("    v_cmp_gt_f32 %s, v%d, v%d" % (S(sT, 2), vO + 12, vT + 1))
    a("    s_nop 4")
    a("    s_and_b64 vcc, vcc, %s" % S(sT, 2))
    a("    s_cmp_eq_u64 vcc, exec")
    a("    s_cbranch_scc0 L%s_fallback" % lab)
    drain = autonop(body[-30:] + tail + d)[30 + len(tail):]
    ep = []
    a = ep.append
    a("L%s_epi:" % lab)
    if stamp:
        a("    s_memtime s[36:37]")
        a("    s_memrealtime s[38:39]")
        a("    s_waitcnt lgkmcnt(0)")
        a("    s_sub_u32 s36, s36, s32")
        a("    s_sub_u32 s38, s38, s34")
        a("    v_mov_b32 v%d, s36" % vX)
        a("    v_mov_b32 v%d, s38" % (vX+1))
        a("    v_mov_b32 v%d, s34" % (vX+2))
        a("    v_mov_b32 v%d, s35" % (vX+3))
        a("    s_lshl_b32 s40, s24, 6")
        a("    s_add_u32 s40, s40, s25")
        a("    s_lshl_b32 s40, s40, 4")
        a("    v_mov_b32 v%d, s40" % (vX+4))
        a("    s_add_u32 s44, s22, %d" % WS_MOE)
        a("    s_addc_u32 s45, s23, 0")
        a("    s_mov_b32 s46, 0x10000")
        a("    s_mov_b32 s47, 0x00020000")
        a("    buffer_store_dwordx4 %s, v%d, s[44:47], 0 offen" % (V(vX,4), vX+4))
    a("    v_rcp_f32 v%d, v%d" % (vT, vO + 12))
    for r in range(12): a("    v_mul_f32 v%d, v%d, v%d" % (vO + r, vO + r, vT))
    for r in range(6): ep.append(cvt(vP + r, vO + 2 * r, vO + 2 * r + 1))
    a("    v_lshlrev_b32 v%d, 3, v%d" % (vT + 5, vT + 3))
    a("    v_add_u32 v%d, v%d, v%d" % (vT + 5, vT + 4, vT + 5))
    a("    buffer_store_dwordx2 %s, v%d, %s, 0 offen" % (V(vP, 2), vT + 5, S(sO, 4)))
    a("    buffer_store_dwordx2 %s, v%d, %s, 0 offen offset:16" % (V(vP + 2, 2), vT + 5, S(sO, 4)))
    a("    s_mov_b32 exec_lo, -1")
    a("    s_mov_b32 exec_hi, 0")
    a("    buffer_store_dwordx2 %s, v%d, %s, 0 offen offset:32" % (V(vP + 4, 2), vT + 5, S(sO, 4)))
    a("    s_endpgm")
    ep = autonop(["    s_nop 15", "    s_nop 15"] + ep)
    fb = []
    a = fb.append
    a("L%s_fallback:" % lab)
    a("    s_waitcnt vmcnt(0)")
    a("    s_nop 15")
    a("    s_nop 15")
    a("    v_mov_b32 v%d, 0xff800000" % vCn)
    a("    s_mov_b32 s%d, 0" % sOffK)
    a("    s_mov_b32 s%d, 64" % sCnt)
    a("L%s_fb1:" % lab)
    fb += loadK(0, sOffK)
    a("    s_waitcnt vmcnt(0)")
    fb.append(QKa(0)); fb.append(QKb(0))
    for r in range(0, 16, 2):
        a("    v_max3_f32 v%d, v%d, v%d, v%d" % (vCn, vCn, vS[0] + r, vS[0] + r + 1))
    a("    s_add_u32 s%d, s%d, %d" % (sOffK, sOffK, KV_REC))
    a("    s_sub_u32 s%d, s%d, 1" % (sCnt, sCnt))
    a("    s_cmp_lg_u32 s%d, 0" % sCnt)
    a("    s_nop 7")
    a("    s_cbranch_scc1 L%s_fb1" % lab)
    a("    v_mov_b32 v%d, v%d" % (vCn + 1, vCn))
    a("    v_permlane32_swap_b32 v%d, v%d" % (vCn, vCn + 1))
    a("    v_max_f32 v%d, v%d, v%d" % (vCn, vCn, vCn + 1))
    a("    s_mov_b32 s26, 0x%x" % f32bits(SCALE32))
    a("    s_mov_b32 s27, 0x%x" % f32bits(LOG2E))
    if mimic1: fb.append(cvt(vCn, "0", vCn))
    a("    v_mul_f32 v%d, s26, v%d" % (vCn, vCn))
    if mimic2: fb.append(cvt(vCn, "0", vCn))
    for r in range(16): a("    v_mov_b32 v%d, 0" % (vO + r))
    a("    s_mov_b32 s%d, 0" % sOffK)
    a("    s_mov_b32 s%d, 64" % sCnt)
    a("L%s_fb2:" % lab)
    fb += loadK(0, sOffK)
    fb += loadV(0, sOffK)
    a("    s_waitcnt vmcnt(0)")
    fb.append(QKa(0)); fb.append(QKb(0))
    for r in range(16):
        x = vS[0] + r
        if mimic1: fb.append(cvt(x, "0", x))
        a("    v_mul_f32 v%d, s26, v%d" % (x, x))
        if mimic2: fb.append(cvt(x, "0", x))
        a("    v_sub_f32 v%d, v%d, v%d" % (x, x, vCn))
        a("    v_mul_f32 v%d, s27, v%d" % (x, x))
        a("    v_exp_f32 v%d, v%d" % (x, x))
    for r in range(8): fb.append(cvt(vP + r, vS[0] + 2 * r, vS[0] + 2 * r + 1))
    fb.append(PV(0, 0)); fb.append(PV(0, 1))
    a("    s_add_u32 s%d, s%d, %d" % (sOffK, sOffK, KV_REC))
    a("    s_sub_u32 s%d, s%d, 1" % (sCnt, sCnt))
    a("    s_cmp_lg_u32 s%d, 0" % sCnt)
    a("    s_nop 15")
    a("    s_cbranch_scc1 L%s_fb2" % lab)
    a("    s_nop 15")
    a("    s_branch L%s_epi" % lab)
    fb = autonop(fb)
    return pro + ["    .p2align 6", "L%s_loop:" % lab] + body + tail + drain + ep + fb

KD = """.section .rodata,"a"
.p2align 6
.amdhsa_kernel {name}
  .amdhsa_next_free_vgpr {nv}
  .amdhsa_next_free_sgpr {ns}
  .amdhsa_accum_offset {nv}
  .amdhsa_group_segment_fixed_size 0
  .amdhsa_kernarg_size 88
  .amdhsa_user_sgpr_count 2
  .amdhsa_user_sgpr_kernarg_segment_ptr 1
  .amdhsa_system_sgpr_workgroup_id_x 1
.end_amdhsa_kernel
.text
"""

if __name__ == "__main__":
    import sys
    ff = "ff" in sys.argv
    code = ["    s_cmp_ge_u32 s2, 256", "    s_cbranch_scc1 L_exit"] + attn_code(force_fallback=ff, stamp=("stamp" in sys.argv)) + ["L_exit:", "    s_endpgm"]
    txt = "; @launch kernel=attn_kernel grid=(256,1,1) block=(512,1,1) lds=0\n.amdgcn_target \"amdgcn-amd-amdhsa--gfx950\"\n.text\n.globl attn_kernel\n.p2align 8\n.type attn_kernel,@function\nattn_kernel:\n"
    txt += "\n".join(code) + "\n" + KD.format(name="attn_kernel", nv=NVGPR, ns=64)
    open(sys.argv[1], "w").write(txt)
```

```python
from asmlib import *
from gen_attn import WS_KV, KV_REC, KV_HEAD, WS_Q, WS_XN, WS_R, WS_WO, f32bits, cvt, mfma4, TOK, ROWB

LDS_ROW = 336
LDS_PLANE = 64 * LDS_ROW
K1_LDS = 4 * LDS_PLANE
PF = 5

def m16(d, a, b, c): return "    v_mfma_f32_16x16x32_bf16 %s, %s, %s, %s" % (V(d, 4), V(a, 4), V(b, 4), c if isinstance(c, str) else V(c, 4))

vLane, vN16, vG = 1, 2, 3
vWoff = 4
vXoff = 5
vLw = 6
vLr = 11
vAI = 12
vA1, vA2, vA3 = 14, 16, 18
vNegM = 20
vT = 24
vXr = 40
vD = 60
vWR = 76
vAcc = 96
vWraw = 160
vFr = 40
vXf = 56
NV = 240
XB = [40, 96, 116, 136]

sX, sW, sWS = 4, 8, 12
sRB, sCB, sWv = 16, 17, 18
sJ = 20
sT = 24
sSelLo, sSelHi = 30, 31
sOut = 32
sWr = 36
sWo = 40

def wloads(step):
    b = vWraw + 16 * (step % PF)
    o = []
    for q in range(4):
        o.append("    s_mov_b32 s%d, %d" % (sJ + q, (8 * step + 2 * q) * 3840))
    for j in range(8):
        o.append("    buffer_load_dwordx2 %s, v%d, %s, s%d offen%s" % (V(b + 2 * j, 2), vWoff, S(sW, 4), sJ + (j >> 1), " offset:3840" if j & 1 else ""))
    return o

def k1_code():
    global vXr
    o = []; a = o.append
    a("    s_cmp_ge_u32 s2, 256")
    a("    s_cbranch_scc1 LK1_exit")
    a("    s_load_dwordx4 s[44:47], s[0:1], 0           ; x, wqkv")
    a("    s_load_dwordx2 s[48:49], s[0:1], 16          ; wo")
    a("    s_load_dwordx2 s[50:51], s[0:1], 32          ; w_r")
    a("    s_load_dwordx2 s[52:53], s[0:1], 80          ; ws")
    a("    s_lshr_b32 s%d, s2, 3" % sRB)
    a("    s_and_b32 s%d, s2, 7" % sCB)
    a("    v_and_b32 v%d, 63, v0" % vLane)
    a("    v_lshrrev_b32 v%d, 6, v0" % vT)
    a("    v_and_b32 v%d, 15, v0" % vN16)
    a("    v_bfe_u32 v%d, v0, 4, 2" % vG)
    a("    v_readfirstlane_b32 s%d, v%d" % (sWv, vT))
    a("    s_mov_b32 s%d, 0x05040100" % sSelLo)
    a("    s_mov_b32 s%d, 0x07060302" % sSelHi)
    a("    s_waitcnt lgkmcnt(0)")
    for srd, p, n in ((sX, 44, TOK * ROWB), (sW, 46, 640 * 3840), (sWo, 48, 640 * 1280), (sWr, 50, 1280), (sWS, 52, 0x1000000)):
        a("    s_mov_b32 s%d, s%d" % (srd, p)); a("    s_mov_b32 s%d, s%d" % (srd + 1, p + 1))
        a("    s_mov_b32 s%d, %d" % (srd + 2, n)); a("    s_mov_b32 s%d, 0x00020000" % (srd + 3))
    a("    s_lshl_b32 s%d, s%d, 6" % (sT, sRB))
    a("    s_lshl_b32 s%d, s%d, 4" % (sT + 1, sWv))
    a("    s_add_u32 s%d, s%d, s%d                      ; first row of this wave" % (sT, sT, sT + 1))
    a("    v_add_u32 v%d, s%d, v%d" % (vT, sT, vG))
    a("    v_mul_u32_u24 v%d, 0x500, v%d" % (vXoff, vT))
    a("    v_lshl_add_u32 v%d, v%d, 4, v%d" % (vXoff, vN16, vXoff))
    a("    v_lshlrev_b32 v%d, 4, v%d" % (vT, vN16))
    for j in range(5):
        a("    buffer_load_dwordx4 %s, v%d, %s, 0 offen offset:%d" % (V(vWR + 4 * j, 4), vT, S(sWr, 4), 256 * j))
    for rg in range(4):
        a("    s_mov_b32 s%d, %d" % (sT + 2, rg * 4 * ROWB))
        for j in range(5):
            a("    buffer_load_dwordx4 %s, v%d, %s, s%d offen offset:%d" % (V(XB[rg] + 4 * j, 4), vXoff, S(sX, 4), sT + 2, 256 * j))
    a("    s_lshl_b32 s%d, s%d, 2" % (sT + 3, sCB))
    a("    s_add_u32 s%d, s%d, s%d                      ; W index 0..31" % (sT + 3, sT + 3, sWv))
    a("    s_lshl_b32 s%d, s%d, 7" % (sT + 4, sT + 3))
    a("    s_mov_b32 s%d, %d" % (sT + 5, 160 * 3840))
    a("    v_mul_lo_u32 v%d, v%d, s%d" % (vWoff, vG, sT + 5))
    a("    v_lshl_add_u32 v%d, v%d, 3, v%d" % (vWoff, vN16, vWoff))
    a("    v_add_u32 v%d, s%d, v%d" % (vWoff, sT + 4, vWoff))
    for st in range(PF): o += wloads(st)
    a("    v_add_u32 v%d, s%d, v%d" % (vT, sT + 1, vG))
    a("    v_mul_u32_u24 v%d, %d, v%d" % (vT, LDS_ROW, vT))
    for j in range(5):
        a("    v_add_u32 v%d, %d, v%d" % (vT + 1, 16 * j, vN16))
        a("    v_mul_u32_u24 v%d, 205, v%d" % (vT + 2, vT + 1))
        a("    v_lshrrev_b32 v%d, 12, v%d                 ; /20" % (vT + 2, vT + 2))
        a("    v_mul_u32_u24 v%d, 20, v%d" % (vT + 3, vT + 2))
        a("    v_sub_u32 v%d, v%d, v%d" % (vT + 3, vT + 1, vT + 3))
        a("    v_mul_u32_u24 v%d, %d, v%d" % (vT + 2, LDS_PLANE, vT + 2))
        a("    v_lshl_add_u32 v%d, v%d, 4, v%d" % (vT + 3, vT + 3, vT + 2))
        a("    v_add_u32 v%d, v%d, v%d" % (vLw + j, vT + 3, vT))
    a("    v_mul_u32_u24 v%d, %d, v%d" % (vLr, LDS_PLANE, vG))
    a("    v_mul_u32_u24 v%d, %d, v%d" % (vT, LDS_ROW, vN16))
    a("    v_add_u32 v%d, v%d, v%d" % (vLr, vLr, vT))
    a("    v_and_b32 v%d, 1, v%d" % (vT + 8, vLane))
    a("    v_lshlrev_b32 v%d, 4, v%d" % (vT + 8, vT + 8))
    a("    v_and_b32 v%d, 2, v%d" % (vT + 9, vLane))
    a("    v_cmp_eq_u32 s[54:55], 0, v%d" % (vT + 9))
    a("    v_mov_b32 v%d, 0x3f80" % (vT + 9))
    a("    v_lshlrev_b32 v%d, v%d, v%d" % (vT + 9, vT + 8, vT + 9))
    a("    v_cndmask_b32 v%d, 0, v%d, s[54:55]" % (vAI, vT + 9))
    a("    v_cndmask_b32 v%d, v%d, 0, s[54:55]" % (vAI + 1, vT + 9))
    a("    v_mov_b32 v%d, 0x3f803f80" % (vT + 10))
    a("    s_lshr_b32 s%d, s%d, 1" % (sT + 4, sCB))
    a("    s_and_b32 s%d, s%d, 1" % (sT + 5, sCB))
    a("    s_cmp_eq_u32 s%d, s%d" % (sT + 4, sWv))
    a("    s_cselect_b32 s%d, s%d, 7                    ; s29: 0/1 = which rg pair, 7 = none" % (sT + 5, sT + 5))
    code = autonop(o)
    for rg in range(4):
        o = []; a = o.append
        vXr = XB[rg]
        a("    s_waitcnt vmcnt(%d)" % (5 * (3 - rg) + 8 * PF))
        a("    v_mov_b32 v%d, 0" % vT); a("    v_mov_b32 v%d, 0" % (vT + 1))
        a("    v_mov_b32 v%d, 0" % (vT + 2)); a("    v_mov_b32 v%d, 0" % (vT + 3))
        for i in range(20):
            a("    v_dot2c_f32_bf16 v%d, v%d, v%d" % (vT + (i & 1), vXr + i, vT + 10))
            a("    v_dot2c_f32_bf16 v%d, v%d, v%d" % (vT + 2 + (i & 1), vXr + i, vXr + i))
        a("    s_nop 2")
        a("    v_add_f32 v%d, v%d, v%d" % (vT, vT, vT + 1))
        a("    v_add_f32 v%d, v%d, v%d" % (vT + 2, vT + 2, vT + 3))
        for sh in (8, 4, 2, 1):
            a("    v_add_f32_dpp v%d, v%d, v%d row_ror:%d row_mask:0xf bank_mask:0xf" % (vT, vT, vT, sh))
            a("    v_add_f32_dpp v%d, v%d, v%d row_ror:%d row_mask:0xf bank_mask:0xf" % (vT + 2, vT + 2, vT + 2, sh))
        a("    v_mul_f32 v%d, 0x%x, v%d                  ; mean" % (vT, f32bits(1.0 / 640), vT))
        a("    v_mul_f32 v%d, 0x%x, v%d                  ; E[x^2]" % (vT + 2, f32bits(1.0 / 640), vT + 2))
        a("    v_fma_f32 v%d, -v%d, v%d, v%d              ; var" % (vT + 2, vT, vT, vT + 2))
        a("    v_max_f32 v%d, 0, v%d" % (vT + 2, vT + 2))
        o.append(cvt(vT, "0", vT))
        o.append(cvt(vT + 2, "0", vT + 2))
        a("    v_add_f32 v%d, 0x%x, v%d" % (vT + 2, f32bits(1e-5), vT + 2))
        o.append(cvt(vT + 2, "0", vT + 2))
        a("    v_sqrt_f32 v%d, v%d" % (vT + 2, vT + 2))
        for r in range(4): a("    v_sub_f32 v%d, 0, v%d" % (vNegM + r, vT))
        o.append(cvt(vT + 2, "0", vT + 2))
        a("    v_rcp_f32 v%d, v%d" % (vT + 3, vT + 2))
        a("    v_fma_f32 v%d, -v%d, v%d, 1.0" % (vT + 4, vT + 2, vT + 3))
        a("    v_fma_f32 v%d, v%d, v%d, v%d" % (vT + 3, vT + 4, vT + 3, vT + 3))
        o.append(cvt(vT + 4, "0", vT + 3))
        a("    v_sub_f32 v%d, v%d, v%d" % (vT + 3, vT + 3, vT + 4))
        o.append(cvt(vT + 5, "0", vT + 3))
        a("    v_sub_f32 v%d, v%d, v%d" % (vT + 3, vT + 3, vT + 5))
        o.append(cvt(vT + 6, "0", vT + 3))
        for reg, src in ((vA1, vT + 4), (vA2, vT + 5), (vA3, vT + 6)):
            a("    v_lshrrev_b32 v%d, 16, v%d" % (src, src))
            a("    v_lshlrev_b32 v%d, v%d, v%d" % (src, vT + 8, src))
            a("    v_cndmask_b32 v%d, 0, v%d, s[54:55]" % (reg, src))
            a("    v_cndmask_b32 v%d, v%d, 0, s[54:55]" % (reg + 1, src))
        def D(i): return vD + 4 * (i & 3)
        st1 = lambda i: [mfma4(D(i), vAI, vXr + 2 * i, vNegM)]
        st2 = lambda i: [cvt(vXr + 2 * i, D(i), D(i) + 1), cvt(vXr + 2 * i + 1, D(i) + 2, D(i) + 3)]
        st3 = lambda i: [mfma4(D(i), vA1, vXr + 2 * i, "0"), mfma4(D(i), vA2, vXr + 2 * i, D(i)), mfma4(D(i), vA3, vXr + 2 * i, D(i))]
        st4 = lambda i: [cvt(vXr + 2 * i, D(i), D(i) + 1), cvt(vXr + 2 * i + 1, D(i) + 2, D(i) + 3)]
        seq = []
        for i in range(10 + 2):
            if i < 10: seq += st1(i)
            if i >= 2: seq += st2(i - 2)
        for i in range(10 + 2):
            s3 = st3(i) if i < 10 else []
            s4 = st4(i - 2) if i >= 2 else []
            mix = []
            for q in range(3):
                if q < len(s3): mix.append(s3[q])
                if q < len(s4): mix.append(s4[q])
            seq += mix
        o += seq
        for j in range(5):
            a("    ds_write_b128 v%d, %s offset:%d" % (vLw + j, V(vXr + 4 * j, 4), rg * 4 * LDS_ROW))
        a("    s_cmp_lg_u32 s%d, %d" % (sT + 5, rg >> 1))
        a("    s_cbranch_scc1 LK1_nor%d" % rg)
        o2 = []; b = o2.append
        b("    s_mov_b32 s%d, %d" % (sT + 4, WS_XN + rg * 4 * ROWB))
        for j in range(5):
            b("    buffer_store_dwordx4 %s, v%d, %s, s%d offen offset:%d" % (V(vXr + 4 * j, 4), vXoff, S(sWS, 4), sT + 4, 256 * j))
        b("    v_mov_b32 v%d, 0" % vT); b("    v_mov_b32 v%d, 0" % (vT + 1))
        for i in range(20):
            b("    v_dot2c_f32_bf16 v%d, v%d, v%d" % (vT + (i & 1), vXr + i, vWR + i))
        b("    s_nop 2")
        b("    v_add_f32 v%d, v%d, v%d" % (vT, vT, vT + 1))
        for sh in (8, 4, 2, 1):
            b("    v_add_f32_dpp v%d, v%d, v%d row_ror:%d row_mask:0xf bank_mask:0xf" % (vT, vT, vT, sh))
        o2.append(cvt(vT, "0", vT))
        b("    v_add_u32 v%d, s%d, v%d" % (vT + 1, sT, vG))
        b("    v_lshlrev_b32 v%d, 2, v%d" % (vT + 1, vT + 1))
        b("    v_add_u32 v%d, %d, v%d" % (vT + 1, WS_R + 16 * rg, vT + 1))
        b("    v_cmp_eq_u32 vcc, 0, v%d" % vN16)
        b("    s_and_saveexec_b64 s[56:57], vcc")
        b("    buffer_store_dword v%d, v%d, %s, 0 offen" % (vT, vT + 1, S(sWS, 4)))
        b("    s_mov_b64 exec, s[56:57]")
        b("    s_nop 1")
        o += o2
        a("LK1_nor%d:" % rg)
        code += autonop(o)
    vXr = XB[0]
    o = []; a = o.append
    a("    s_waitcnt lgkmcnt(0)")
    a("    s_barrier")
    a("    s_cmp_ge_u32 s%d, 30" % (sT + 3))
    a("    s_cbranch_scc1 LK1_wo")
    a("    s_cmp_ge_u32 s%d, 20" % (sT + 3))
    a("    s_cbranch_scc1 LK1_gemmV")
    code += o
    def gemm(vtype):
        o = []; a = o.append
        def xreads(s):
            b = vXf + 16 * (s & 1)
            return ["    ds_read_b128 %s, v%d offset:%d" % (V(b + 4 * rt, 4), vLr, rt * 16 * LDS_ROW + 16 * s) for rt in range(4)]
        o += xreads(0)
        for s in range(20):
            raw = vWraw + 16 * (s % PF)
            outstanding = min(PF, 20 - s) * 8
            a("    s_waitcnt vmcnt(%d)" % (outstanding - 8))
            perms = []
            for t in range(4):
                for p in range(4):
                    perms.append("    v_perm_b32 v%d, v%d, v%d, s%d" % (vFr + 4 * t + p, raw + 2 * (2 * p + 1) + (t >> 1), raw + 2 * (2 * p) + (t >> 1), sSelHi if t & 1 else sSelLo))
            o += perms
            if s + PF < 20: o += wloads(s + PF)
            if s + 1 < 20:
                o += xreads(s + 1)
                a("    s_waitcnt lgkmcnt(4)")
            else:
                a("    s_waitcnt lgkmcnt(0)")
            xb = vXf + 16 * (s & 1)
            for t in range(4):
                for rt in range(4):
                    acc = vAcc + 16 * rt + 4 * t
                    c = "0" if s == 0 else acc
                    if vtype: o.append(m16(acc, xb + 4 * rt, vFr + 4 * t, c))
                    else: o.append(m16(acc, vFr + 4 * t, xb + 4 * rt, c))
        return o
    o = gemm(False); a = o.append
    a("    s_lshl_b32 s%d, s%d, 6                      ; token base" % (sT, sRB))
    a("    s_cmp_ge_u32 s%d, 10" % (sT + 3))
    a("    s_cbranch_scc1 LK1_epiK")
    a("    v_add_u32 v%d, s%d, v%d" % (vT, sT, vN16))
    a("    v_mul_u32_u24 v%d, 0x500, v%d" % (vT, vT))
    a("    v_lshl_add_u32 v%d, v%d, 5, v%d" % (vT, vG, vT))
    a("    s_lshl_b32 s%d, s%d, 7" % (sT + 4, sT + 3))
    a("    s_add_u32 s%d, s%d, %d" % (sT + 4, sT + 4, WS_Q))
    for rt in range(4):
        pk = vFr + 8 * (rt & 1)
        for r in range(4):
            o.append(cvt(pk + 2 * r, vAcc + 16 * rt + r, vAcc + 16 * rt + 4 + r))
            o.append(cvt(pk + 2 * r + 1, vAcc + 16 * rt + 8 + r, vAcc + 16 * rt + 12 + r))
        a("    buffer_store_dwordx4 %s, v%d, %s, s%d offen" % (V(pk, 4), vT, S(sWS, 4), sT + 4))
        a("    buffer_store_dwordx4 %s, v%d, %s, s%d offen offset:16" % (V(pk + 4, 4), vT, S(sWS, 4), sT + 4))
        a("    s_add_u32 s%d, s%d, %d" % (sT + 4, sT + 4, 16 * ROWB))
    a("    s_endpgm")
    a("LK1_epiK:")
    a("    s_sub_u32 s%d, s%d, 10" % (sT + 4, sT + 3))
    a("    s_lshl_b32 s%d, s%d, 4                      ; col/4 base = 16(W-10)" % (sT + 4, sT + 4))
    a("    v_lshl_add_u32 v%d, v%d, 2, s%d             ; c4 = base + 4g" % (vT, vG, sT + 4))
    for r in range(4):
        a("    v_add_u32 v%d, %d, v%d" % (vT + 1, r, vT))
        a("    v_mul_u32_u24 v%d, 205, v%d" % (vT + 2, vT + 1))
        a("    v_lshrrev_b32 v%d, 10, v%d                 ; head = c4/5" % (vT + 2, vT + 2))
        a("    v_mul_u32_u24 v%d, 5, v%d" % (vT + 3, vT + 2))
        a("    v_sub_u32 v%d, v%d, v%d                    ; dg" % (vT + 3, vT + 1, vT + 3))
        a("    s_mov_b32 s%d, %d" % (sT + 5, KV_HEAD))
        a("    v_mul_lo_u32 v%d, v%d, s%d" % (vT + 2, vT + 2, sT + 5))
        a("    v_lshrrev_b32 v%d, 1, v%d" % (vT + 4, vT + 3))
        a("    v_lshlrev_b32 v%d, 9, v%d                  ; dg=4 -> 1024 too" % (vT + 4, vT + 4))
        a("    v_and_b32 v%d, 1, v%d" % (vT + 5, vT + 3))
        a("    v_lshl_add_u32 v%d, v%d, 3, v%d" % (vT + 4, vT + 5, vT + 4))
        a("    v_add_u32 v%d, v%d, v%d" % (vT + 2, vT + 2, vT + 4))
        a("    v_cmp_eq_u32 vcc, 4, v%d" % (vT + 3))
        a("    v_cndmask_b32 v%d, 16, 8, vcc" % (vT + 5)) if False else None
        a("    v_mov_b32 v%d, 16" % (vT + 5))
        a("    v_cndmask_b32 v%d, v%d, 8, vcc" % (vT + 5, vT + 5))
        a("    v_mul_u32_u24 v%d, v%d, v%d" % (vT + 4, vT + 5, vN16))
        a("    v_add_u32 v%d, v%d, v%d                    ; i = n16" % (vD + 2 * r, vT + 2, vT + 4))
        a("    v_lshl_add_u32 v%d, v%d, 4, v%d            ; i = n16+16" % (vD + 2 * r + 1, vT + 5, vD + 2 * r))
    a("    s_mul_i32 s%d, s%d, %d" % (sT + 4, sRB, 2 * KV_REC))
    a("    s_add_u32 s%d, s%d, %d" % (sT + 4, sT + 4, WS_KV))
    for rt in range(4):
        pk = vFr + 8 * (rt & 1)
        for r in range(4):
            o.append(cvt(pk + 2 * r, vAcc + 16 * rt + r, vAcc + 16 * rt + 4 + r))
            o.append(cvt(pk + 2 * r + 1, vAcc + 16 * rt + 8 + r, vAcc + 16 * rt + 12 + r))
        for r in range(4):
            a("    buffer_store_dwordx2 %s, v%d, %s, s%d offen offset:%d" % (V(pk + 2 * r, 2), vD + 2 * r + (rt & 1), S(sWS, 4), sT + 4, (rt >> 1) * KV_REC))
    a("    s_endpgm")
    code += autonop(o)
    o = ["LK1_gemmV:"] + gemm(True); a = o.append
    a("    s_sub_u32 s%d, s%d, 20" % (sT + 4, sT + 3))
    a("    s_lshl_b32 s%d, s%d, 4" % (sT + 4, sT + 4))
    a("    v_add_u32 v%d, s%d, v%d                    ; c4" % (vT, sT + 4, vN16))
    a("    v_mul_u32_u24 v%d, 205, v%d" % (vT + 2, vT))
    a("    v_lshrrev_b32 v%d, 10, v%d                 ; head" % (vT + 2, vT + 2))
    a("    v_mul_u32_u24 v%d, 5, v%d" % (vT + 3, vT + 2))
    a("    v_sub_u32 v%d, v%d, v%d                    ; dg (d = 4dg + t)" % (vT + 3, vT, vT + 3))
    a("    s_mov_b32 s%d, %d" % (sT + 5, KV_HEAD))
    a("    v_mul_lo_u32 v%d, v%d, s%d" % (vT + 2, vT + 2, sT + 5))
    a("    v_lshl_add_u32 v%d, v%d, 6, v%d            ; + d*16 (t=0)" % (vT + 2, vT + 3, vT + 2))
    a("    v_and_b32 v%d, 1, v%d" % (vT + 4, vG))
    a("    v_mul_u32_u24 v%d, 320, v%d" % (vT + 4, vT + 4))
    a("    v_add_u32 v%d, v%d, v%d" % (vT + 2, vT + 2, vT + 4))
    a("    v_lshrrev_b32 v%d, 1, v%d" % (vT + 4, vG))
    a("    v_lshl_add_u32 v%d, v%d, 3, v%d" % (vT + 2, vT + 4, vT + 2))
    a("    s_mul_i32 s%d, s%d, %d" % (sT + 4, sRB, 2 * KV_REC))
    a("    s_add_u32 s%d, s%d, %d" % (sT + 4, sT + 4, WS_KV + 1280))
    a("    s_add_u32 s%d, s%d, %d" % (sT + 5, sT + 4, KV_REC))
    for rt in range(4):
        pk = vFr + 8 * (rt & 1)
        for t in range(4):
            acc = vAcc + 16 * rt + 4 * t
            o.append(cvt(pk + 2 * t, acc, acc + 1))
            o.append(cvt(pk + 2 * t + 1, acc + 2, acc + 3))
        for t in range(4):
            a("    buffer_store_dwordx2 %s, v%d, %s, s%d offen offset:%d" % (V(pk + 2 * t, 2), vT + 2, S(sWS, 4), sT + 4 + (rt >> 1), (rt & 1) * 640 + 16 * t))
    a("    s_endpgm")
    code += autonop(o)
    o = ["LK1_wo:"]; a = o.append
    a("    s_lshl_b32 s%d, s%d, 1" % (sT, sRB))
    a("    s_add_u32 s%d, s%d, s%d" % (sT, sT, sT + 3))
    a("    s_sub_u32 s%d, s%d, 30                      ; f" % (sT, sT))
    a("    v_mul_u32_u24 v%d, %d, v%d" % (vT, 8 * 1280, vG))
    a("    v_lshl_add_u32 v%d, v%d, 1, v%d            ; lane src offset" % (vT, vN16, vT))
    a("    v_lshlrev_b32 v%d, 4, v%d                  ; lane dst offset" % (vT + 1, vLane))
    a("LK1_wo_loop:")
    a("    s_mul_i32 s%d, s%d, 52429" % (sT + 1, sT))
    a("    s_lshr_b32 s%d, s%d, 18                     ; f/5" % (sT + 1, sT + 1))
    a("    s_mul_i32 s%d, s%d, 5" % (sT + 2, sT + 1))
    a("    s_sub_u32 s%d, s%d, s%d                     ; ct" % (sT + 2, sT, sT + 2))
    a("    s_mul_i32 s%d, s%d, 52429" % (sT + 4, sT + 1))
    a("    s_lshr_b32 s%d, s%d, 18                     ; cbw = f/25" % (sT + 4, sT + 4))
    a("    s_mul_i32 s%d, s%d, 5" % (sT + 5, sT + 4))
    a("    s_sub_u32 s%d, s%d, s%d                     ; s" % (sT + 1, sT + 1, sT + 5))
    a("    s_and_b32 s%d, s%d, 3                       ; w" % (sT + 5, sT + 4))
    a("    s_lshr_b32 s%d, s%d, 2                      ; cb" % (sT + 4, sT + 4))
    a("    s_mul_i32 s%d, s%d, %d" % (sT + 5, sT + 5, 160 * 1280))
    a("    s_mul_i32 s%d, s%d, %d" % (sT + 1, sT + 1, 32 * 1280))
    a("    s_add_u32 s%d, s%d, s%d" % (sT + 5, sT + 5, sT + 1))
    a("    s_mul_i32 s%d, s%d, 160" % (sT + 4, sT + 4))
    a("    s_add_u32 s%d, s%d, s%d" % (sT + 5, sT + 5, sT + 4))
    a("    s_lshl_b32 s%d, s%d, 5" % (sT + 2, sT + 2))
    a("    s_add_u32 s%d, s%d, s%d                     ; src soffset" % (sT + 5, sT + 5, sT + 2))
    a("    s_add_u32 s%d, s%d, %d" % (sT + 4, sT + 5, 4 * 1280))
    for j in range(8):
        a("    buffer_load_ushort v%d, v%d, %s, s%d offen offset:%d" % (vXr + 4 + j, vT, S(sWo, 4), sT + 5 if j < 4 else sT + 4, (j & 3) * 1280))
    a("    s_lshl_b32 s%d, s%d, 10" % (sT + 1, sT))
    a("    s_add_u32 s%d, s%d, %d" % (sT + 1, sT + 1, WS_WO))
    a("    s_waitcnt vmcnt(0)")
    for p in range(4):
        a("    v_lshl_or_b32 v%d, v%d, 16, v%d" % (vXr + p, vXr + 4 + 2 * p + 1, vXr + 4 + 2 * p))
    a("    buffer_store_dwordx4 %s, v%d, %s, s%d offen" % (V(vXr, 4), vT + 1, S(sWS, 4), sT + 1))
    a("    s_add_u32 s%d, s%d, 64" % (sT, sT))
    a("    s_cmp_lt_u32 s%d, 800" % sT)
    a("    s_waitcnt vmcnt(0)")
    a("    s_cbranch_scc1 LK1_wo_loop")
    a("LK1_exit:")
    a("    s_endpgm")
    code += autonop(o)
    return [c for c in code if c is not None]
```

```python
from asmlib import *
from gen_attn import *

NMOE = 32
GRID = NMOE + 256
MOE_PART = WS_MOE + 4096
K2_LDS = 24576
L_XS = 0
L_RED = 5120
L_HM = 21504
L_TOP = 22016

def moe_code():
    o = []; a = o.append
    sWS, sG, sU, sD = 4, 8, 12, 16
    sP = 20; sT = 24
    vT = 1
    vAcc = 16
    vXS = 24
    vC = 32
    vW = 40
    a("    s_cmp_ge_u32 s2, 27")
    a("    s_cbranch_scc1 LM_exit")
    a("    s_load_dwordx4 s[44:47], s[0:1], 40")
    a("    s_load_dwordx2 s[48:49], s[0:1], 56          ; down")
    a("    s_load_dwordx2 s[52:53], s[0:1], 80          ; ws")
    a("    s_mov_b32 s%d, s2" % sP)
    a("    v_lshrrev_b32 v%d, 6, v0" % vT)
    a("    v_and_b32 v%d, 31, v0                       ; c2" % (vT + 1))
    a("    v_lshrrev_b32 v%d, 5, v0                    ; kq" % (vT + 2))
    a("    v_readfirstlane_b32 s%d, v%d                ; wave" % (sP + 1, vT))
    a("    s_waitcnt lgkmcnt(0)")
    for srd, p, n in ((sG, 44, 640 * 3456), (sU, 46, 640 * 3456), (sD, 48, 1728 * 1280), (sWS, 52, 0x1000000)):
        a("    s_mov_b32 s%d, s%d" % (srd, p)); a("    s_mov_b32 s%d, s%d" % (srd + 1, p + 1))
        a("    s_mov_b32 s%d, %d" % (srd + 2, n)); a("    s_mov_b32 s%d, 0x00020000" % (srd + 3))
    a("    v_lshlrev_b32 v%d, 4, v0" % (vT + 3))
    a("    s_mov_b32 s%d, %d" % (sT, WS_R))
    a("    buffer_load_dwordx4 %s, v%d, %s, s%d offen" % (V(vXS, 4), vT + 3, S(sWS, 4), sT))
    a("    s_mov_b32 s%d, %d" % (sT, 40 * 3456))
    a("    v_mul_lo_u32 v%d, v%d, s%d" % (vT + 3, vT + 2, sT))
    a("    v_lshl_add_u32 v%d, v%d, 2, v%d" % (vT + 3, vT + 1, vT + 3))
    a("    s_lshl_b32 s%d, s%d, 7                      ; f0*2" % (sT, sP))
    for k in range(40):
        a("    buffer_load_dword v%d, v%d, %s, s%d offen" % (vW + k, vT + 3, S(sG, 4), sT))
        a("    buffer_load_dword v%d, v%d, %s, s%d offen" % (vW + 40 + k, vT + 3, S(sU, 4), sT))
        a("    s_add_u32 s%d, s%d, 3456" % (sT, sT))
        if k == 20:
            pass
    a("    s_waitcnt vmcnt(60)")
    a("    v_lshlrev_b32 v%d, 2, v0" % (vT + 4))
    a("    v_sub_u32 v%d, 2047, v%d                    ; 2047-idx" % (vT + 4, vT + 4))
    for i in range(4):
        x = vXS + i
        a("    v_ashrrev_i32 v%d, 31, v%d" % (vT + 5, x))
        a("    v_or_b32 v%d, 0x80000000, v%d" % (vT + 5, vT + 5))
        a("    v_xor_b32 v%d, v%d, v%d" % (x, x, vT + 5))
        a("    v_and_b32 v%d, 0xffff0000, v%d" % (x, x))
        a("    v_subrev_u32 v%d, %d, v%d" % (vT + 5, i, vT + 4))
        a("    v_or_b32 v%d, v%d, v%d" % (x, x, vT + 5))
    a("    v_mov_b32 v%d, 0" % (vT + 8))
    for rnd in range(2):
        a("    v_max_u32 v%d, v%d, v%d" % (vT + 5, vXS, vXS + 1))
        a("    v_max3_u32 v%d, v%d, v%d, v%d" % (vT + 5, vT + 5, vXS + 2, vXS + 3))
        for sh in (8, 4, 2, 1):
            a("    v_max_u32_dpp v%d, v%d, v%d row_ror:%d row_mask:0xf bank_mask:0xf" % (vT + 5, vT + 5, vT + 5, sh))
        for q in range(4):
            a("    v_readlane_b32 s%d, v%d, %d" % (sT + q, vT + 5, 16 * q))
        a("    s_nop 1")
        a("    s_max_u32 s%d, s%d, s%d" % (sT, sT, sT + 1))
        a("    s_max_u32 s%d, s%d, s%d" % (sT + 2, sT + 2, sT + 3))
        a("    s_max_u32 s%d, s%d, s%d" % (sT, sT, sT + 2))
        a("    v_mov_b32 v%d, s%d" % (vT + 5, sT))
        a("    v_lshlrev_b32 v%d, 2, v%d" % (vT + 6, vT))
        a("    ds_write_b32 v%d, v%d offset:%d" % (vT + 6, vT + 5, L_TOP + 32 * rnd))
        a("    s_waitcnt lgkmcnt(0)")
        a("    s_barrier")
        a("    ds_read_b128 %s, v%d offset:%d" % (V(vC, 4), vT + 8, L_TOP + 32 * rnd))
        a("    ds_read_b128 %s, v%d offset:%d" % (V(vC + 4, 4), vT + 8, L_TOP + 32 * rnd + 16))
        a("    s_waitcnt lgkmcnt(0)")
        a("    v_max3_u32 v%d, v%d, v%d, v%d" % (vT + 5, vC, vC + 1, vC + 2))
        a("    v_max3_u32 v%d, v%d, v%d, v%d" % (vT + 5, vT + 5, vC + 3, vC + 4))
        a("    v_max3_u32 v%d, v%d, v%d, v%d" % (vT + 5, vT + 5, vC + 5, vC + 6))
        a("    v_max_u32 v%d, v%d, v%d" % (vT + 5, vT + 5, vC + 7))
        a("    v_readfirstlane_b32 s%d, v%d" % (sP + 2 + rnd, vT + 5))
        if rnd == 0:
            for i in range(4):
                a("    v_cmp_eq_u32 vcc, v%d, v%d" % (vXS + i, vT + 5))
                a("    v_cndmask_b32 v%d, v%d, 0, vcc" % (vXS + i, vXS + i))
    a("    s_nop 3")
    for rnd in range(2):
        a("    s_and_b32 s%d, s%d, 0x7ff" % (sT + rnd, sP + 2 + rnd))
        a("    s_sub_u32 s%d, 2047, s%d                    ; idx" % (sT + rnd, sT + rnd))
    a("    v_cmp_gt_u32 vcc, 320, v0")
    a("    s_and_saveexec_b64 s[28:29], vcc")
    a("    s_cbranch_execz LM_noxs")
    a("    v_cmp_le_u32 vcc, 160, v0")
    a("    v_mov_b32 v%d, s%d" % (vT + 5, sT))
    a("    v_mov_b32 v%d, s%d" % (vT + 6, sT + 1))
    a("    v_cndmask_b32 v%d, v%d, v%d, vcc" % (vT + 5, vT + 5, vT + 6))
    a("    v_subrev_u32 v%d, 160, v0" % (vT + 6))
    a("    v_cndmask_b32 v%d, v0, v%d, vcc              ; c4" % (vT + 6, vT + 6))
    a("    v_mul_u32_u24 v%d, 0x500, v%d" % (vT + 5, vT + 5))
    a("    v_lshl_add_u32 v%d, v%d, 3, v%d" % (vT + 5, vT + 6, vT + 5))
    a("    s_mov_b32 s%d, %d" % (sT + 2, WS_XN))
    a("    buffer_load_dwordx2 %s, v%d, %s, s%d offen" % (V(vC, 2), vT + 5, S(sWS, 4), sT + 2))
    a("    v_lshlrev_b32 v%d, 4, v0                    ; lds addr = t*16" % (vT + 6))
    a("    s_waitcnt vmcnt(0)")
    a("    v_lshlrev_b32 v%d, 16, v%d" % (vC + 4, vC))
    a("    v_and_b32 v%d, 0xffff0000, v%d" % (vC + 5, vC))
    a("    v_lshlrev_b32 v%d, 16, v%d" % (vC + 6, vC + 1))
    a("    v_and_b32 v%d, 0xffff0000, v%d" % (vC + 7, vC + 1))
    a("    ds_write_b128 v%d, %s offset:%d" % (vT + 6, V(vC + 4, 4), L_XS))
    a("LM_noxs:")
    a("    s_mov_b64 exec, s[28:29]")
    a("    s_or_b32 s%d, s%d, s%d" % (sT + 2, sP, sP + 1))
    a("    s_cmp_lg_u32 s%d, 0" % (sT + 2))
    a("    s_cbranch_scc1 LM_nohdr")
    for rnd in range(2):
        a("    s_and_b32 s%d, s%d, 0xffff0000" % (sT + 2, sP + 2 + rnd))
        a("    s_ashr_i32 s%d, s%d, 31" % (sT + 3, sT + 2))
        a("    s_not_b32 s%d, s%d" % (sT + 3, sT + 3))
        a("    s_or_b32 s%d, s%d, 0x80000000" % (sT + 3, sT + 3))
        a("    s_xor_b32 s%d, s%d, s%d" % (sT + 2, sT + 2, sT + 3))
        a("    s_and_b32 s%d, s%d, 0xffff0000" % (sT + 2, sT + 2))
        a("    v_mov_b32 v%d, s%d" % (vC + 2 + rnd, sT + 2))
        a("    v_mul_f32 v%d, 0x%x, v%d" % (vC + 2 + rnd, f32bits(-LOG2E), vC + 2 + rnd))
        a("    v_exp_f32 v%d, v%d" % (vC + 2 + rnd, vC + 2 + rnd))
        a("    v_add_f32 v%d, 1.0, v%d" % (vC + 2 + rnd, vC + 2 + rnd))
        a("    v_rcp_f32 v%d, v%d" % (vC + 2 + rnd, vC + 2 + rnd))
        o.append(cvt(vC + 2 + rnd, "0", vC + 2 + rnd))
        a("    v_mov_b32 v%d, s%d" % (vC + rnd, sT + rnd))
    a("    v_mov_b32 v%d, %d" % (vT + 5, WS_MOE))
    a("    s_mov_b64 exec, 1")
    a("    buffer_store_dwordx4 %s, v%d, %s, 0 offen" % (V(vC, 4), vT + 5, S(sWS, 4)))
    a("    s_mov_b64 exec, -1")
    a("    s_nop 1")
    a("LM_nohdr:")
    a("    s_waitcnt vmcnt(0) lgkmcnt(0)")
    a("    s_barrier")
    for i in range(8): a("    v_mov_b32 v%d, 0" % (vAcc + i))
    a("    v_mul_u32_u24 v%d, 160, v%d                 ; kq*40*4" % (vT + 5, vT + 2))
    for ch in range(10):
        a("    ds_read_b128 %s, v%d offset:%d" % (V(vXS, 4), vT + 5, L_XS + 16 * ch))
        a("    ds_read_b128 %s, v%d offset:%d" % (V(vXS + 4, 4), vT + 5, L_XS + 2560 + 16 * ch))
        a("    s_waitcnt lgkmcnt(0)")
        for kk in range(4):
            k = 4 * ch + kk
            for m in range(2):
                w = vW + 40 * m + k
                a("    v_lshlrev_b32 v%d, 16, v%d" % (vC, w))
                a("    v_and_b32 v%d, 0xffff0000, v%d" % (vC + 1, w))
                for tok in range(2):
                    a("    v_fmac_f32 v%d, v%d, v%d" % (vAcc + 4 * m + 2 * tok, vC, vXS + 4 * tok + kk))
                    a("    v_fmac_f32 v%d, v%d, v%d" % (vAcc + 4 * m + 2 * tok + 1, vC + 1, vXS + 4 * tok + kk))
    a("    s_cmp_ge_u32 s%d, 5" % (sP + 1))
    a("    s_cbranch_scc1 LM_nodl")
    a("    v_lshlrev_b32 v%d, 2, v0" % (vT + 6))
    a("    s_mul_i32 s%d, s%d, %d" % (sT + 2, sP, 64 * 1280))
    for f in range(64):
        a("    buffer_load_dword v%d, v%d, %s, s%d offen offset:%d" % (vW + f, vT + 6, S(sD, 4), sT + 2, (f % 3) * 1280))
        if f % 3 == 2: a("    s_add_u32 s%d, s%d, %d" % (sT + 2, sT + 2, 3 * 1280))
    a("LM_nodl:")
    a("    v_lshlrev_b32 v%d, 10, v%d" % (vT + 5, vT + 2))
    a("    v_lshl_add_u32 v%d, v%d, 3, v%d" % (vT + 5, vT + 1, vT + 5))
    for q in range(4):
        a("    ds_write_b64 v%d, %s offset:%d" % (vT + 5, V(vAcc + 2 * q, 2), L_RED + 256 * q))
    a("    s_waitcnt lgkmcnt(0)")
    a("    s_barrier")
    a("    s_cmp_ge_u32 s%d, 2" % (sP + 1))
    a("    s_cbranch_scc1 LM_nored")
    a("    v_lshlrev_b32 v%d, 2, v0" % (vT + 5))
    a("    v_mov_b32 v%d, 0" % vAcc); a("    v_mov_b32 v%d, 0" % (vAcc + 1))
    for half in range(4):
        for q in range(4):
            kq = 4 * half + q
            a("    ds_read_b32 v%d, v%d offset:%d" % (vC + q, vT + 5, L_RED + 1024 * kq))
            a("    ds_read_b32 v%d, v%d offset:%d" % (vC + 4 + q, vT + 5, L_RED + 1024 * kq + 512))
        a("    s_waitcnt lgkmcnt(0)")
        for q in range(4):
            a("    v_add_f32 v%d, v%d, v%d" % (vAcc, vAcc, vC + q))
            a("    v_add_f32 v%d, v%d, v%d" % (vAcc + 1, vAcc + 1, vC + 4 + q))
    o.append(cvt(vAcc, "0", vAcc)); o.append(cvt(vAcc + 1, "0", vAcc + 1))
    a("    v_mul_f32 v%d, 0x%x, v%d" % (vC, f32bits(-LOG2E), vAcc))
    a("    v_exp_f32 v%d, v%d" % (vC, vC))
    a("    v_add_f32 v%d, 1.0, v%d" % (vC, vC))
    a("    v_rcp_f32 v%d, v%d" % (vC, vC))
    a("    v_mul_f32 v%d, v%d, v%d" % (vC, vC, vAcc))
    o.append(cvt(vC, "0", vC))
    a("    v_mul_f32 v%d, v%d, v%d" % (vC, vC, vAcc + 1))
    o.append(cvt(vC, "0", vC))
    a("    ds_write_b32 v%d, v%d offset:%d" % (vT + 5, vC, L_HM))
    a("    s_waitcnt lgkmcnt(0)")
    a("LM_nored:")
    a("    s_barrier")
    a("    s_cmp_ge_u32 s%d, 5" % (sP + 1))
    a("    s_cbranch_scc1 LM_exit")
    for i in range(4): a("    v_mov_b32 v%d, 0" % (vAcc + i))
    a("    s_waitcnt vmcnt(0)")
    for ch in range(16):
        a("    ds_read_b128 %s, v%d offset:%d" % (V(vXS, 4), vT + 8, L_HM + 16 * ch))
        a("    ds_read_b128 %s, v%d offset:%d" % (V(vXS + 4, 4), vT + 8, L_HM + 256 + 16 * ch))
        a("    s_waitcnt lgkmcnt(0)")
        for kk in range(4):
            w = vW + 4 * ch + kk
            a("    v_lshlrev_b32 v%d, 16, v%d" % (vC, w))
            a("    v_and_b32 v%d, 0xffff0000, v%d" % (vC + 1, w))
            for tok in range(2):
                a("    v_fmac_f32 v%d, v%d, v%d" % (vAcc + 2 * tok, vC, vXS + 4 * tok + kk))
                a("    v_fmac_f32 v%d, v%d, v%d" % (vAcc + 2 * tok + 1, vC + 1, vXS + 4 * tok + kk))
    a("    v_lshlrev_b32 v%d, 3, v0" % (vT + 5))
    a("    s_mul_i32 s%d, s%d, %d" % (sT + 2, sP, 2 * 2560))
    a("    s_add_u32 s%d, s%d, %d" % (sT + 2, sT + 2, MOE_PART))
    a("    buffer_store_dwordx2 %s, v%d, %s, s%d offen" % (V(vAcc, 2), vT + 5, S(sWS, 4), sT + 2))
    a("    buffer_store_dwordx2 %s, v%d, %s, s%d offen offset:2560" % (V(vAcc + 2, 2), vT + 5, S(sWS, 4), sT + 2))
    a("LM_exit:")
    a("    s_endpgm")
    return autonop(o)

def k2_code(**kw):
    c = ["    s_cmp_lt_u32 s2, %d" % NMOE, "    s_cbranch_scc1 LM_start",
         "    s_sub_u32 s2, s2, %d" % NMOE,
         "    s_cmp_ge_u32 s2, 256", "    s_cbranch_scc1 LM_exit"]
    c += attn_code(**kw)
    c += ["LM_start:"] + moe_code()
    return c
```

```python
from asmlib import *
from gen_attn import *
from gen_k2 import MOE_PART
from gen_k1 import m16

RS = 336
WST = 64 * RS
K3_LDS = 4 * WST
NV = 240

def k3_code():
    o = []; a = o.append
    sWS, sX, sOut = 4, 8, 12
    sRB, sCB, sWv = 16, 17, 18
    sT = 24
    vLane, vN16, vG = 1, 2, 3
    vT = 4
    vAcc = 16
    vO = 96
    vW = 160
    a("    s_cmp_ge_u32 s2, 256")
    a("    s_cbranch_scc1 LK3_exit")
    a("    s_load_dwordx2 s[44:45], s[0:1], 0           ; x")
    a("    s_load_dwordx2 s[46:47], s[0:1], 64          ; out")
    a("    s_load_dwordx2 s[52:53], s[0:1], 80          ; ws")
    a("    s_lshr_b32 s%d, s2, 3" % sRB)
    a("    s_and_b32 s%d, s2, 7" % sCB)
    a("    v_and_b32 v%d, 63, v0" % vLane)
    a("    v_lshrrev_b32 v%d, 6, v0" % vT)
    a("    v_and_b32 v%d, 15, v0" % vN16)
    a("    v_bfe_u32 v%d, v0, 4, 2" % vG)
    a("    v_readfirstlane_b32 s%d, v%d" % (sWv, vT))
    a("    s_waitcnt lgkmcnt(0)")
    for srd, p, n in ((sX, 44, TOK * ROWB), (sOut, 46, TOK * ROWB), (sWS, 52, 0x1000000)):
        a("    s_mov_b32 s%d, s%d" % (srd, p)); a("    s_mov_b32 s%d, s%d" % (srd + 1, p + 1))
        a("    s_mov_b32 s%d, %d" % (srd + 2, n)); a("    s_mov_b32 s%d, 0x00020000" % (srd + 3))
    a("    v_mul_u32_u24 v%d, 0x500, v%d" % (vT, vN16))
    a("    v_lshl_add_u32 v%d, v%d, 4, v%d" % (vT, vG, vT))
    a("    v_lshlrev_b32 v%d, 4, v%d" % (vT + 1, vLane))
    a("    s_mul_i32 s%d, s%d, %d" % (sT, sRB, 64 * ROWB))
    a("    s_mul_i32 s%d, s%d, 320" % (sT + 1, sWv))
    a("    s_add_u32 s%d, s%d, s%d" % (sT, sT, sT + 1))
    a("    s_add_u32 s%d, s%d, %d" % (32, sT, WS_O))
    for rt in range(1, 4): a("    s_add_u32 s%d, s%d, %d" % (32 + rt, 32, rt * 16 * ROWB))
    a("    s_lshl_b32 s%d, s%d, 2" % (sT, sCB))
    a("    s_add_u32 s%d, s%d, s%d" % (sT, sT, sWv))
    a("    s_mul_i32 s%d, s%d, %d" % (sT, sT, 25 * 1024))
    a("    s_add_u32 s%d, s%d, %d" % (sT, sT, WS_WO))
    def loads(s):
        b = s % 4
        r = []
        r.append("    s_add_u32 s%d, s%d, %d" % (sT + 1, sT, s * 5 * 1024))
        r.append("    s_add_u32 s%d, s%d, %d" % (sT + 2, sT, s * 5 * 1024 + 4096))
        for rt in range(4):
            r.append("    buffer_load_dwordx4 %s, v%d, %s, s%d offen offset:%d" % (V(vO + 16 * b + 4 * rt, 4), vT, S(sWS, 4), 32 + rt, 64 * s))
        for ct in range(5):
            r.append("    buffer_load_dwordx4 %s, v%d, %s, s%d offen offset:%d" % (V(vW + 20 * b + 4 * ct, 4), vT + 1, S(sWS, 4), sT + 1 if ct < 4 else sT + 2, 1024 * (ct & 3)))
        return r
    for s in range(4): o += loads(s)
    for s in range(5):
        b = s % 4
        a("    s_waitcnt vmcnt(%d)" % {0: 27, 1: 27, 2: 18, 3: 9, 4: 0}[s])
        for rt in range(4):
            for ct in range(5):
                acc = vAcc + 4 * (5 * rt + ct)
                o.append(m16(acc, vW + 20 * b + 4 * ct, vO + 16 * b + 4 * rt, "0" if s == 0 else acc))
        if s == 0: o += loads(4)
    a("    v_mul_u32_u24 v%d, %d, v%d" % (vT, RS, vN16))
    a("    v_lshl_add_u32 v%d, v%d, 4, v%d" % (vT, vG, vT))
    a("    s_mul_i32 s%d, s%d, %d" % (sT, sWv, WST))
    a("    v_add_u32 v%d, s%d, v%d" % (vT, sT, vT))
    vX = 96; vXN = 106; vG2 = 116; vL = 121; vR = 126
    for q in range(5):
        a("    v_add_u32 v%d, %d, v0" % (vT + 2, 256 * q))
        a("    v_mul_u32_u24 v%d, 3277, v%d" % (vT + 3, vT + 2))
        a("    v_lshrrev_b32 v%d, 16, v%d                 ; row = it/20" % (vT + 3, vT + 3))
        a("    v_mul_u32_u24 v%d, 20, v%d" % (vT + 4, vT + 3))
        a("    v_sub_u32 v%d, v%d, v%d                    ; c4" % (vT + 4, vT + 2, vT + 4))
        a("    v_mul_u32_u24 v%d, %d, v%d" % (vL + q, RS, vT + 3))
        a("    v_lshl_add_u32 v%d, v%d, 4, v%d            ; lds addr" % (vL + q, vT + 4, vL + q))
        a("    v_mul_u32_u24 v%d, 0x500, v%d" % (vG2 + q, vT + 3))
        a("    v_lshl_add_u32 v%d, v%d, 3, v%d            ; global off (row*1280 + c4*8)" % (vG2 + q, vT + 4, vG2 + q))
        a("    v_mov_b32 v%d, v%d" % (vR + q, vT + 3))
    a("    s_mul_i32 s%d, s%d, %d" % (sT + 1, sRB, 64 * ROWB))
    a("    s_mul_i32 s%d, s%d, 160" % (sT + 2, sCB))
    a("    s_add_u32 s%d, s%d, s%d                     ; tile byte offset" % (sT + 1, sT + 1, sT + 2))
    a("    s_add_u32 s%d, s%d, %d" % (sT + 2, sT + 1, WS_XN))
    for q in range(5):
        a("    buffer_load_dwordx2 %s, v%d, %s, s%d offen" % (V(vX + 2 * q, 2), vG2 + q, S(sX, 4), sT + 1))
        a("    buffer_load_dwordx2 %s, v%d, %s, s%d offen" % (V(vXN + 2 * q, 2), vG2 + q, S(sWS, 4), sT + 2))
    a("    v_mov_b32 v%d, %d" % (vT + 2, WS_MOE))
    a("    buffer_load_dwordx4 %s, v%d, %s, 0 offen" % (V(132, 4), vT + 2, S(sWS, 4)))
    for rt in range(4):
        for ct in range(5):
            acc = vAcc + 4 * (5 * rt + ct)
            a("    ds_write_b128 v%d, %s offset:%d" % (vT, V(acc, 4), rt * 16 * RS + 64 * ct))
    a("    s_waitcnt lgkmcnt(0)")
    a("    s_barrier")
    vS = 16
    for q in range(5):
        for w in range(4):
            a("    ds_read_b128 %s, v%d offset:%d" % (V(vS + 16 * q + 4 * w, 4), vL + q, w * WST))
    a("    s_waitcnt vmcnt(0) lgkmcnt(0)")
    a("    v_readfirstlane_b32 s36, v132")
    a("    v_readfirstlane_b32 s37, v133")
    a("    v_readfirstlane_b32 s38, v134")
    a("    v_readfirstlane_b32 s39, v135")
    for q in range(5):
        b = vS + 16 * q
        for e in range(4):
            a("    v_add_f32 v%d, v%d, v%d" % (b + e, b + e, b + 4 + e))
            a("    v_add_f32 v%d, v%d, v%d" % (b + 8 + e, b + 8 + e, b + 12 + e))
            a("    v_add_f32 v%d, v%d, v%d" % (b + e, b + e, b + 8 + e))
            o.append(cvt(b + e, "0", b + e))
        for h in range(2):
            a("    v_lshlrev_b32 v%d, 16, v%d" % (b + 4 + 2 * h, vX + 2 * q + h))
            a("    v_and_b32 v%d, 0xffff0000, v%d" % (b + 5 + 2 * h, vX + 2 * q + h))
            a("    v_lshlrev_b32 v%d, 16, v%d" % (b + 8 + 2 * h, vXN + 2 * q + h))
            a("    v_and_b32 v%d, 0xffff0000, v%d" % (b + 9 + 2 * h, vXN + 2 * q + h))
        for e in range(4):
            a("    v_add_f32 v%d, v%d, v%d" % (b + e, b + e, b + 4 + e))
            o.append(cvt(b + e, "0", b + e))
    code = autonop(o); o = []; a = o.append
    for tok in range(2):
        a("    s_lshr_b32 s%d, s%d, 6" % (sT + 3, 36 + tok))
        a("    s_cmp_lg_u32 s%d, s%d" % (sT + 3, sRB))
        a("    s_cbranch_scc1 LK3_nomoe%d" % tok)
        a("    s_and_b32 s%d, s%d, 63                     ; local row" % (sT + 3, 36 + tok))
        a("    s_mul_i32 s%d, s%d, 320" % (sT + 4, sCB))
        a("    s_add_u32 s%d, s%d, %d" % (sT + 4, sT + 4, MOE_PART + tok * 2560))
        a("    s_mul_i32 s%d, s%d, %d" % (sT + 5, sT + 3, 2 * ROWB))
        for q in range(5):
            b = vS + 16 * q
            a("    v_cmp_eq_u32 vcc, s%d, v%d" % (sT + 3, vR + q))
            a("    s_and_saveexec_b64 s[40:41], vcc")
            a("    s_cbranch_execz LK3_skip%d_%d" % (tok, q))
            a("    v_lshlrev_b32 v%d, 1, v%d" % (vT + 2, vG2 + q))
            a("    v_subrev_u32 v%d, s%d, v%d" % (vT + 2, sT + 5, vT + 2))
            a("    s_mov_b32 s42, s%d" % (sT + 4))
            for p in range(27):
                a("    buffer_load_dwordx4 %s, v%d, %s, s42 offen" % (V(132 + 4 * p, 4), vT + 2, S(sWS, 4)))
                a("    s_add_u32 s42, s42, 5120")
            a("    s_waitcnt vmcnt(0)")
            for p in range(1, 27):
                for e in range(4):
                    a("    v_add_f32 v%d, v%d, v%d" % (132 + e, 132 + e, 132 + 4 * p + e))
            for e in range(4):
                o.append(cvt(132 + e, "0", 132 + e))
                a("    v_mul_f32 v%d, s%d, v%d" % (132 + e, 38 + tok, 132 + e))
                o.append(cvt(132 + e, "0", 132 + e))
                a("    v_add_f32 v%d, v%d, v%d" % (b + 8 + e, b + 8 + e, 132 + e))
                o.append(cvt(b + 8 + e, "0", b + 8 + e))
            a("LK3_skip%d_%d:" % (tok, q))
            a("    s_mov_b64 exec, s[40:41]")
        a("LK3_nomoe%d:" % tok)
    for q in range(5):
        b = vS + 16 * q
        for e in range(4):
            a("    v_add_f32 v%d, v%d, v%d" % (b + e, b + e, b + 8 + e))
        o.append(cvt(b + 4, b, b + 1)); o.append(cvt(b + 5, b + 2, b + 3))
        a("    buffer_store_dwordx2 %s, v%d, %s, s%d offen" % (V(b + 4, 2), vG2 + q, S(sOut, 4), sT + 1))
    a("LK3_exit:")
    a("    s_endpgm")
    code += autonop(["    s_nop 4"] + o)
    return code
```

```python
import sys
from gen_attn import *
import gen_k1
HEAD = open("parallel_sum__softmax_full_mha__moe_arch_mod__prompt.s.ref").read().split("; Override launch")[0]
def kern(name, code, nv, ns):
    return ".globl %s\n.p2align 8\n.type %s,@function\n%s:\n" % (name, name, name) + "\n".join(code) + "\n" + KD.format(name=name, nv=nv, ns=ns)
def build(path, which=("k1","k2","k3"), **kw):
    launches = []; body = ""
    if "k1" in which:
        launches.append("; @launch kernel=k1_kernel grid=(256,1,1) block=(256,1,1) lds=%d" % gen_k1.K1_LDS)
        body += kern("k1_kernel", gen_k1.k1_code(), gen_k1.NV, 64)
    if "k2" in which:
        import gen_k2
        launches.append("; @launch kernel=k2_kernel grid=(%d,1,1) block=(512,1,1) lds=%d" % (gen_k2.GRID, gen_k2.K2_LDS))
        body += kern("k2_kernel", gen_k2.k2_code(**kw), NVGPR, 64)
    if "k3" in which:
        import gen_k3
        launches.append("; @launch kernel=k3_kernel grid=(256,1,1) block=(256,1,1) lds=%d" % gen_k3.K3_LDS)
        body += kern("k3_kernel", gen_k3.k3_code(), gen_k3.NV, 64)
    txt = HEAD + "\n".join(launches) + "\n.amdgcn_target \"amdgcn-amd-amdhsa--gfx950\"\n.text\n" + body
    open(path, "w").write(txt)
if __name__ == "__main__":
    build(sys.argv[1], which=sys.argv[2].split(","))
```

```python
import struct, math
from asmlib import *
WS_KV = 0x0
KV_REC = 2560
KV_HEAD = 64 * KV_REC
WS_Q = 0x500000
Q_REC = 1280
Q_HEAD = 64 * 1280
WS_O = 0x780000
WS_XN = 0xA00000
WS_R = 0xC80000
WS_KEY = 0xC84000
WS_MOE = 0xC90000
WS_WO = 0xD00000
WS_DBG = 0xE00000
ROWB = 1280
TOK = 2048
def f32bits(x): return struct.unpack("<I", struct.pack("<f", x))[0]
SCALE32 = 0.22360679507255554
LOG2E = math.log2(math.e)
QSCALE = (20 ** -0.5) * LOG2E
def mfma32(d, a, b, c): return "    v_mfma_f32_32x32x16_bf16 %s, %s, %s, %s" % (V(d, 16), V(a, 4), V(b, 4), c if isinstance(c, str) else V(c, 16))
def mfma328(d, a, b, c): return "    v_mfma_f32_32x32x8_bf16 %s, %s, %s, %s" % (V(d, 16), V(a, 2), V(b, 2), c if isinstance(c, str) else V(c, 16))
def mfma4(d, a, b, c): return "    v_mfma_f32_4x4x4_16b_bf16 %s, %s, %s, %s" % (V(d, 4), V(a, 2), V(b, 2), c if isinstance(c, str) else V(c, 4))
def m16(d, a, b, c): return "    v_mfma_f32_16x16x32_bf16 %s, %s, %s, %s" % (V(d, 4), V(a, 4), V(b, 4), c if isinstance(c, str) else V(c, 4))
def cvt(d, a, b): return "    v_cvt_pk_bf16_f32 v%d, %s, %s" % (d, a if isinstance(a, str) else "v%d" % a, b if isinstance(b, str) else "v%d" % b)
KD = """.section .rodata,"a"
.p2align 6
.amdhsa_kernel {name}
  .amdhsa_next_free_vgpr {nv}
  .amdhsa_next_free_sgpr {ns}
  .amdhsa_accum_offset {nv}
  .amdhsa_group_segment_fixed_size 0
  .amdhsa_kernarg_size 88
  .amdhsa_user_sgpr_count 2
  .amdhsa_user_sgpr_kernarg_segment_ptr 1
  .amdhsa_system_sgpr_workgroup_id_x 1
.end_amdhsa_kernel
.text
"""
```

```python
import struct, math
from asmlib import *
from common import *

BIAS = 80.0
vK0o, vK1o, vVo = 1, 2, 3
vQ0 = [4, 8]; vQ1 = [12, 14]
vP = 16
vT = 24
vS = [32, 48]
vO = [64, 80]
vKV = [96, 112]
NVGPR = 128
sKV, sQ, sO = 4, 8, 12
sOffK, sOffV, sCnt = 16, 17, 20
sVm = 18
sHead, sQt, sHf = 24, 25, 21
sT = 28
ATT_LDS = 32768

def loadK(st, soff):
    b = vKV[st]
    return ["    buffer_load_dwordx4 %s, v%d, %s, s%d offen" % (V(b, 4), vK0o, S(sKV, 4), soff),
            "    s_mov_b32 exec_hi, 0",
            "    buffer_load_dwordx2 %s, v%d, %s, s%d offen" % (V(b + 12, 2), vK1o, S(sKV, 4), soff),
            "    s_mov_b32 exec_hi, -1"]
def loadV(st, soff):
    b = vKV[st]
    return ["    s_mov_b64 exec, %s" % S(sVm, 2),
            "    buffer_load_dwordx4 %s, v%d, %s, s%d offen" % (V(b + 4, 4), vVo, S(sKV, 4), soff),
            "    buffer_load_dwordx4 %s, v%d, %s, s%d offen offset:640" % (V(b + 8, 4), vVo, S(sKV, 4), soff),
            "    s_mov_b64 exec, -1"]
def QKa(x, st): return mfma32(vS[x], vKV[st], vQ0[x], "0")
def QKb(x, st): return mfma328(vS[x], vKV[st] + 12, vQ1[x], vS[x])
def PV(x, st, c): return mfma32(vO[x], vKV[st] + 4 + 4 * c, vP + 4 * c, vO[x])
def E(x, k): return ["    v_exp_f32 v%d, v%d" % (vS[x] + 4 * k + i, vS[x] + 4 * k + i) for i in range(4)]
def C(x, k): return [cvt(vP + 2 * k, vS[x] + 4 * k, vS[x] + 4 * k + 1), cvt(vP + 2 * k + 1, vS[x] + 4 * k + 2, vS[x] + 4 * k + 3)]

def tile_body(st):
    o = []
    o += C(1, 3) + [QKa(1, st)] + E(0, 0)
    o += C(0, 0) + [QKb(1, st)] + loadK(st, sOffK) + ["    s_add_u32 s%d, s%d, %d" % (sOffK, sOffK, KV_REC)] + E(0, 1)
    o += C(0, 1) + [PV(1, st ^ 1, 1)] + loadV(st ^ 1, sOffV) + ["    s_add_u32 s%d, s%d, %d" % (sOffV, sOffV, KV_REC)] + E(0, 2)
    o += C(0, 2) + ["    s_waitcnt vmcnt(4)", PV(0, st, 0)] + E(0, 3)
    o += C(0, 3) + ["    s_waitcnt vmcnt(6)", QKa(0, st ^ 1)] + E(1, 0)
    o += C(1, 0) + [QKb(0, st ^ 1)] + E(1, 1)
    o += C(1, 1) + [PV(0, st, 1)] + E(1, 2)
    o += C(1, 2) + [PV(1, st, 0)] + E(1, 3)
    return o

def attn_code(force_fallback=False, lab="A", stamp=False):
    o = []; a = o.append
    a("    s_load_dwordx2 s[22:23], s[0:1], 80          ; ws")
    a("    v_and_b32 v%d, 63, v0                      ; lane" % vT)
    a("    v_lshrrev_b32 v%d, 6, v0                   ; wave" % (vT + 1))
    a("    s_and_b32 s24, s2, 7")
    a("    s_lshr_b32 s25, s2, 3")
    a("    s_and_b32 s26, s25, 3")
    a("    s_lshl_b32 s24, s24, 2")
    a("    s_add_u32 s24, s24, s26                     ; head")
    a("    s_lshr_b32 s25, s25, 2")
    a("    v_readfirstlane_b32 s26, v%d" % (vT + 1))
    a("    s_lshl_b32 s25, s25, 2")
    a("    s_lshr_b32 s%d, s26, 2                      ; key half" % sHf)
    a("    s_and_b32 s26, s26, 3")
    a("    s_add_u32 s25, s25, s26")
    a("    s_mul_i32 s27, s24, %d" % KV_HEAD)
    a("    v_and_b32 v%d, 31, v%d" % (vT + 2, vT))
    a("    v_lshrrev_b32 v%d, 5, v%d" % (vT + 3, vT))
    a("    v_lshlrev_b32 v%d, 4, v%d" % (vK0o, vT))
    a("    v_lshlrev_b32 v%d, 3, v%d" % (vK1o, vT + 2))
    a("    v_add_u32 v%d, 1024, v%d" % (vK1o, vK1o))
    a("    v_mul_u32_u24 v%d, 20, v%d" % (vVo, vT + 3))
    a("    v_add_u32 v%d, v%d, v%d" % (vVo, vVo, vT + 2))
    a("    v_lshlrev_b32 v%d, 4, v%d" % (vVo, vVo))
    a("    v_add_u32 v%d, 1280, v%d" % (vVo, vVo))
    a("    v_cmp_gt_u32 %s, 20, v%d" % (S(sVm, 2), vT + 2))
    a("    s_lshl_b32 s26, s25, 6")
    a("    v_add_u32 v%d, s26, v%d" % (vT + 4, vT + 2))
    a("    v_mul_u32_u24 v%d, 0x500, v%d" % (vT + 4, vT + 4))
    a("    s_mul_i32 s26, s24, 40")
    a("    v_add_u32 v%d, s26, v%d                    ; row base + head*40 (tile A)" % (vT + 4, vT + 4))
    a("    v_lshl_add_u32 v%d, v%d, 4, v%d" % (vT + 5, vT + 3, vT + 4))
    for st in range(2):
        a("    v_mov_b32 v%d, 0x3f80" % (vKV[st] + 12))
        a("    v_mov_b32 v%d, 0" % (vKV[st] + 13))
    for x in range(2):
        a("    v_mov_b32 v%d, 0" % vQ1[x]); a("    v_mov_b32 v%d, 0" % (vQ1[x] + 1))
    a("    v_and_b32 v%d, 27, v%d" % (vT + 6, vT + 2))
    a("    v_cmp_eq_u32 vcc, 24, v%d" % (vT + 6))
    a("    v_mov_b32 v%d, 0x3f803f80" % (vT + 7))
    a("    v_cndmask_b32 v%d, 0, v%d, vcc" % (vT + 7, vT + 7))
    for st in range(2):
        for r in range(8):
            a("    v_mov_b32 v%d, v%d" % (vKV[st] + 4 + r, vT + 7))
    a("    s_waitcnt lgkmcnt(0)")
    a("    s_add_u32 s%d, s22, s27" % sKV)
    a("    s_addc_u32 s%d, s23, 0" % (sKV + 1))
    a("    s_mov_b32 s%d, %d" % (sKV + 2, KV_HEAD))
    a("    s_mov_b32 s%d, 0x00020000" % (sKV + 3))
    a("    s_add_u32 s%d, s22, %d" % (sQ, WS_Q))
    a("    s_addc_u32 s%d, s23, 0" % (sQ + 1))
    a("    s_mov_b32 s%d, %d" % (sQ + 2, TOK * ROWB))
    a("    s_mov_b32 s%d, 0x00020000" % (sQ + 3))
    a("    s_add_u32 s%d, s22, %d" % (sO, WS_O))
    a("    s_addc_u32 s%d, s23, 0" % (sO + 1))
    a("    s_mov_b32 s%d, %d" % (sO + 2, TOK * ROWB))
    a("    s_mov_b32 s%d, 0x00020000" % (sO + 3))
    a("    s_mov_b32 s%d, 0" % sOffK)
    o += loadK(1, sOffK)
    a("    s_mov_b32 s26, %d" % (32 * ROWB))
    a("    buffer_load_dwordx4 %s, v%d, %s, 0 offen" % (V(vQ0[0], 4), vT + 5, S(sQ, 4)))
    a("    buffer_load_dwordx4 %s, v%d, %s, s26 offen" % (V(vQ0[1], 4), vT + 5, S(sQ, 4)))
    a("    s_mov_b32 exec_hi, 0")
    a("    buffer_load_dwordx2 %s, v%d, %s, 0 offen offset:32" % (V(vQ1[0], 2), vT + 4, S(sQ, 4)))
    a("    buffer_load_dwordx2 %s, v%d, %s, s26 offen offset:32" % (V(vQ1[1], 2), vT + 4, S(sQ, 4)))
    a("    s_mov_b32 exec_hi, -1")
    a("    s_mul_i32 s%d, s%d, %d" % (sOffK, sHf, 32 * KV_REC))
    a("    s_mov_b32 s%d, s%d" % (sOffV, sOffK))
    o += loadK(0, sOffK)
    a("    s_add_u32 s%d, s%d, %d" % (sOffK, sOffK, KV_REC))
    for x in range(2):
        for r in range(16): a("    v_mov_b32 v%d, 0" % (vO[x] + r))
    for r in range(8): a("    v_mov_b32 v%d, 0" % (vP + r))
    a("    s_waitcnt vmcnt(2)")
    o += [QKa(0, 1), QKb(0, 1), QKa(1, 1), QKb(1, 1)]
    o += loadK(1, sOffK)
    a("    s_add_u32 s%d, s%d, %d" % (sOffK, sOffK, KV_REC))
    o += loadV(0, sOffV)
    a("    s_add_u32 s%d, s%d, %d" % (sOffV, sOffV, KV_REC))
    a("    v_cmp_ne_u32 vcc, 0, v%d" % (vT + 3))
    for x in range(2):
        s = vS[x]; m = vT + 6 + x
        a("    v_max3_f32 v%d, v%d, v%d, v%d" % (m, s, s + 1, s + 2))
        for r in range(3, 15, 2):
            a("    v_max3_f32 v%d, v%d, v%d, v%d" % (m, m, s + r, s + r + 1))
        a("    v_max_f32 v%d, v%d, v%d" % (m, m, s + 15))
        a("    v_mov_b32 v%d, v%d" % (vT, m))
        a("    v_permlane32_swap_b32 v%d, v%d" % (m, vT))
        a("    v_max_f32 v%d, v%d, v%d" % (m, m, vT))
        a("    v_sub_f32 v%d, 0x%x, v%d" % (m, f32bits(-BIAS), m))
        o.append(cvt(m, m, "0"))
        a("    v_cndmask_b32 v%d, v%d, v%d, vcc" % (vQ1[x], vQ1[x], m))
    for r in range(4): a("    v_mov_b32 v%d, 0" % (vS[1] + 12 + r))
    a("    s_waitcnt vmcnt(4)                          ; K(0)")
    o += [QKa(0, 0), QKb(0, 0)]
    a("    s_mov_b32 s%d, 16" % sCnt)
    if force_fallback:
        a("    s_mov_b32 s%d, 1" % sCnt)
    if stamp:
        a("    s_memtime s[32:33]")
        a("    s_memrealtime s[34:35]")
        a("    s_waitcnt lgkmcnt(0)")
    a("    s_nop 7")
    pro = autonop(o)
    body = tile_body(0) + tile_body(1)
    tail = ["    s_sub_u32 s%d, s%d, 1" % (sCnt, sCnt), "    s_cmp_lg_u32 s%d, 0" % sCnt, "    s_cbranch_scc1 L%s_loop" % lab]
    bad = check(pro[-30:] + body + tail + body, "attn loop")
    assert not bad, "\n".join(bad)
    d = []; a = d.append
    d += C(1, 3) + [PV(1, 1, 1)]
    if stamp:
        a("    s_memtime s[36:37]")
        a("    s_memrealtime s[38:39]")
        a("    s_waitcnt lgkmcnt(0)")
        a("    s_sub_u32 s36, s36, s32")
        a("    s_sub_u32 s38, s38, s34")
        a("    v_mov_b32 v%d, s36" % vP)
        a("    v_mov_b32 v%d, s38" % (vP + 1))
        a("    v_mov_b32 v%d, s34" % (vP + 2))
        a("    v_mov_b32 v%d, s35" % (vP + 3))
        a("    s_lshl_b32 s40, s24, 5")
        a("    s_add_u32 s40, s40, s25")
        a("    s_lshl_b32 s40, s40, 1")
        a("    s_add_u32 s40, s40, s%d" % sHf)
        a("    s_lshl_b32 s40, s40, 4")
        a("    v_mov_b32 v%d, s40" % (vT + 6))
        a("    s_add_u32 s44, s22, %d" % WS_DBG)
        a("    s_addc_u32 s45, s23, 0")
        a("    s_mov_b32 s46, 0x10000")
        a("    s_mov_b32 s47, 0x00020000")
        a("    buffer_store_dwordx4 %s, v%d, s[44:47], 0 offen" % (V(vP, 4), vT + 6))
    a("    s_and_b32 s26, s25, 3")
    a("    s_lshl_b32 s26, s26, 13                     ; qp*8192")
    a("    s_lshl_b32 s27, s%d, 12" % sHf)
    a("    s_add_u32 s27, s27, s26")
    a("    s_xor_b32 s26, s27, 4096")
    a("    v_add_u32 v%d, s27, v%d" % (vT + 6, vK0o))
    a("    v_add_u32 v%d, s26, v%d" % (vT + 7, vK0o))
    a("    s_cmp_eq_u32 s%d, 0" % sHf)
    a("    s_cbranch_scc0 L%s_up" % lab)
    for q in range(4): a("    ds_write_b128 v%d, %s offset:%d" % (vT + 6, V(vO[1] + 4 * q, 4), 1024 * q))
    a("    s_branch L%s_xch" % lab)
    a("L%s_up:" % lab)
    for q in range(4): a("    ds_write_b128 v%d, %s offset:%d" % (vT + 6, V(vO[0] + 4 * q, 4), 1024 * q))
    a("    s_waitcnt lgkmcnt(0)")
    for r in range(13): a("    v_mov_b32 v%d, v%d" % (vO[0] + r, vO[1] + r))
    for r in range(4): a("    v_mov_b32 v%d, v%d" % (vQ0[0] + r, vQ0[1] + r))
    for r in range(2): a("    v_mov_b32 v%d, v%d" % (vQ1[0] + r, vQ1[1] + r))
    a("    v_add_u32 v%d, %d, v%d" % (vT + 4, 32 * ROWB, vT + 4))
    a("L%s_xch:" % lab)
    a("    s_waitcnt lgkmcnt(0)")
    a("    s_barrier")
    for q in range(4): a("    ds_read_b128 %s, v%d offset:%d" % (V(vS[0] + 4 * q, 4), vT + 7, 1024 * q))
    a("    s_waitcnt lgkmcnt(0)")
    O = vO[0]
    for r in range(13): a("    v_add_f32 v%d, v%d, v%d" % (O + r, O + r, vS[0] + r))
    if force_fallback:
        a("    s_branch L%s_fallback" % lab)
    a("    v_add_f32 v%d, |v%d|, |v%d|" % (vT, O, O + 1))
    for r in range(2, 13): a("    v_add_f32 v%d, v%d, |v%d|" % (vT, vT, O + r))
    a("    v_mov_b32 v%d, 0x7f000000" % (vT + 1))
    a("    v_cmp_lt_f32 vcc, v%d, v%d                 ; finite (and not huge)" % (vT, vT + 1))
    a("    v_mov_b32 v%d, 0x03800000                  ; 2^-120" % (vT + 1))
    a("    v_cmp_gt_f32 %s, v%d, v%d" % (S(sT, 2), O + 12, vT + 1))
    a("    s_nop 4")
    a("    s_and_b64 vcc, vcc, %s" % S(sT, 2))
    a("    s_cmp_eq_u64 vcc, exec")
    a("    s_cbranch_scc0 L%s_fallback" % lab)
    lin = autonop(body[-30:] + tail + d[:3] + ["    s_nop 15"] + d[3:])[30 + len(tail):]
    drain = lin
    ep = []; a = ep.append
    a("L%s_epi:" % lab)
    a("    v_rcp_f32 v%d, v%d" % (vT, O + 12))
    for r in range(12): a("    v_mul_f32 v%d, v%d, v%d" % (O + r, O + r, vT))
    for r in range(6): ep.append(cvt(vP + r, O + 2 * r, O + 2 * r + 1))
    a("    v_lshl_add_u32 v%d, v%d, 3, v%d" % (vT + 5, vT + 3, vT + 4))
    a("    buffer_store_dwordx2 %s, v%d, %s, 0 offen" % (V(vP, 2), vT + 5, S(sO, 4)))
    a("    buffer_store_dwordx2 %s, v%d, %s, 0 offen offset:16" % (V(vP + 2, 2), vT + 5, S(sO, 4)))
    a("    s_mov_b32 exec_hi, 0")
    a("    buffer_store_dwordx2 %s, v%d, %s, 0 offen offset:32" % (V(vP + 4, 2), vT + 5, S(sO, 4)))
    a("    s_endpgm")
    ep = autonop(ep)
    fb = []; a = fb.append
    M = vT + 6
    a("L%s_fallback:" % lab)
    a("    s_waitcnt vmcnt(0)")
    a("    v_cmp_eq_u32 vcc, 0, v%d" % (vT + 3))
    a("    v_mov_b32 v%d, 0xff800000" % M)
    a("    v_cndmask_b32 v%d, 0, v%d, vcc              ; drop the stand-in" % (vQ1[0], vQ1[0]))
    a("    s_mov_b32 s%d, 0" % sOffK)
    a("    s_mov_b32 s%d, 64" % sCnt)
    a("L%s_fb1:" % lab)
    fb += loadK(0, sOffK)
    a("    s_waitcnt vmcnt(0)")
    fb += [QKa(0, 0), QKb(0, 0)]
    for r in range(0, 16, 2):
        a("    v_max3_f32 v%d, v%d, v%d, v%d" % (M, M, vS[0] + r, vS[0] + r + 1))
    a("    s_add_u32 s%d, s%d, %d" % (sOffK, sOffK, KV_REC))
    a("    s_sub_u32 s%d, s%d, 1" % (sCnt, sCnt))
    a("    s_cmp_lg_u32 s%d, 0" % sCnt)
    a("    s_nop 7")
    a("    s_cbranch_scc1 L%s_fb1" % lab)
    a("    v_mov_b32 v%d, v%d" % (M + 1, M))
    a("    v_permlane32_swap_b32 v%d, v%d" % (M, M + 1))
    a("    v_max_f32 v%d, v%d, v%d" % (M, M, M + 1))
    for r in range(16): a("    v_mov_b32 v%d, 0" % (O + r))
    a("    s_mov_b32 s%d, 0" % sOffK)
    a("    s_mov_b32 s%d, 64" % sCnt)
    a("L%s_fb2:" % lab)
    fb += loadK(0, sOffK)
    fb += loadV(0, sOffK)
    a("    s_waitcnt vmcnt(0)")
    fb += [QKa(0, 0), QKb(0, 0)]
    for r in range(16):
        x = vS[0] + r
        a("    v_sub_f32 v%d, v%d, v%d" % (x, x, M))
        a("    v_exp_f32 v%d, v%d" % (x, x))
    for k in range(4): fb += C(0, k)
    fb += [PV(0, 0, 0), PV(0, 0, 1)]
    a("    s_add_u32 s%d, s%d, %d" % (sOffK, sOffK, KV_REC))
    a("    s_sub_u32 s%d, s%d, 1" % (sCnt, sCnt))
    a("    s_cmp_lg_u32 s%d, 0" % sCnt)
    a("    s_nop 15")
    a("    s_cbranch_scc1 L%s_fb2" % lab)
    a("    s_nop 15")
    a("    s_branch L%s_epi" % lab)
    fb = autonop(fb)
    return pro + ["    .p2align 6", "L%s_loop:" % lab] + body + tail + drain + ep + fb

if __name__ == "__main__":
    import sys
    code = ["    s_cmp_ge_u32 s2, 256", "    s_cbranch_scc1 L_exit"] + attn_code(force_fallback=("ff" in sys.argv), stamp=("stamp" in sys.argv)) + ["L_exit:", "    s_endpgm"]
    txt = "; @launch kernel=attn_kernel grid=(256,1,1) block=(512,1,1) lds=%d\n.amdgcn_target \"amdgcn-amd-amdhsa--gfx950\"\n.text\n.globl attn_kernel\n.p2align 8\n.type attn_kernel,@function\nattn_kernel:\n" % ATT_LDS
    txt += "\n".join(code) + "\n" + KD.format(name="attn_kernel", nv=NVGPR, ns=64)
    open(sys.argv[1], "w").write(txt)
```

```python
from asmlib import *
from common import *

LDS_ROW = 336
LDS_PLANE = 64 * LDS_ROW
L_RS = 0
L_X = 512
K1_LDS = 4 * LDS_PLANE + 512
PF = 4

vLane, vN16, vG = 1, 2, 3
vWoff = 4
vXoff = 5
vLw = 6
vLr = 11
vAI = 12
vOne = 14
vNegM = 16
vSum = 20
vSq = 24
vT = 28
vD = 60
vAcc = 96
vWraw = 160
vFr = 40
vXf = 56
NV = 224
XB = [40, 96, 116, 136]

sX, sW, sWS = 4, 8, 12
sRB, sCB, sWv, sWi = 16, 17, 18, 19
sJ = 20
sT = 24
sSelLo, sSelHi = 30, 31
sWr = 36
sCnt = 40

def wloads(slot, first=None):
    b = vWraw + 16 * slot
    o = []
    for j in range(8):
        o.append("    buffer_load_dwordx2 %s, v%d, %s, s%d offen%s" % (V(b + 2 * j, 2), vWoff, S(sW, 4), sJ + (j >> 1), " offset:3840" if j & 1 else ""))
    for q in range(4):
        o.append("    s_add_u32 s%d, s%d, %d" % (sJ + q, sJ + q, 8 * 3840))
    return o

def k1_code():
    o = []; a = o.append
    a("    s_cmp_ge_u32 s2, 256")
    a("    s_cbranch_scc1 LK1_exit")
    a("    s_load_dwordx4 s[44:47], s[0:1], 0           ; x, wqkv")
    a("    s_load_dwordx2 s[50:51], s[0:1], 32          ; w_r")
    a("    s_load_dwordx2 s[52:53], s[0:1], 80          ; ws")
    a("    s_lshr_b32 s%d, s2, 3" % sRB)
    a("    s_and_b32 s%d, s2, 7" % sCB)
    a("    v_and_b32 v%d, 63, v0" % vLane)
    a("    v_lshrrev_b32 v%d, 6, v0" % vT)
    a("    v_and_b32 v%d, 15, v0" % vN16)
    a("    v_bfe_u32 v%d, v0, 4, 2" % vG)
    a("    v_readfirstlane_b32 s%d, v%d" % (sWv, vT))
    a("    s_mov_b32 s%d, 0x05040100" % sSelLo)
    a("    s_mov_b32 s%d, 0x07060302" % sSelHi)
    a("    s_lshl_b32 s%d, s%d, 6" % (sT, sRB))
    a("    s_lshl_b32 s%d, s%d, 4" % (sT + 1, sWv))
    a("    s_add_u32 s%d, s%d, s%d                      ; first row of this wave" % (sT, sT, sT + 1))
    a("    v_add_u32 v%d, s%d, v%d" % (vT, sT, vG))
    a("    v_mul_u32_u24 v%d, 0x500, v%d" % (vXoff, vT))
    a("    v_lshl_add_u32 v%d, v%d, 4, v%d" % (vXoff, vN16, vXoff))
    a("    s_lshl_b32 s%d, s%d, 2" % (sWi, sCB))
    a("    s_add_u32 s%d, s%d, s%d                      ; W index 0..31" % (sWi, sWi, sWv))
    a("    s_lshl_b32 s%d, s%d, 7" % (sT + 4, sWi))
    a("    s_mov_b32 s%d, %d" % (sT + 5, 160 * 3840))
    a("    v_mul_lo_u32 v%d, v%d, s%d" % (vWoff, vG, sT + 5))
    a("    v_lshl_add_u32 v%d, v%d, 3, v%d" % (vWoff, vN16, vWoff))
    a("    v_add_u32 v%d, s%d, v%d" % (vWoff, sT + 4, vWoff))
    for q in range(4): a("    s_mov_b32 s%d, %d" % (sJ + q, 2 * q * 3840))
    a("    s_waitcnt lgkmcnt(0)")
    for srd, p, n in ((sX, 44, TOK * ROWB), (sW, 46, 640 * 3840), (sWr, 50, 1280), (sWS, 52, 0x1000000)):
        a("    s_mov_b32 s%d, s%d" % (srd, p)); a("    s_mov_b32 s%d, s%d" % (srd + 1, p + 1))
        a("    s_mov_b32 s%d, %d" % (srd + 2, n)); a("    s_mov_b32 s%d, 0x00020000" % (srd + 3))
    for rg in range(4):
        a("    s_mov_b32 s%d, %d" % (sT + 2, rg * 4 * ROWB))
        for j in range(5):
            a("    buffer_load_dwordx4 %s, v%d, %s, s%d offen offset:%d" % (V(XB[rg] + 4 * j, 4), vXoff, S(sX, 4), sT + 2, 256 * j))
    for st in range(PF): o += wloads(st)
    a("    v_add_u32 v%d, s%d, v%d                      ; local row (rg 0)" % (vT + 4, sT + 1, vG))
    a("    v_mul_u32_u24 v%d, %d, v%d" % (vT, LDS_ROW, vT + 4))
    a("    v_add_u32 v%d, %d, v%d" % (vT, L_X, vT))
    for j in range(5):
        a("    v_add_u32 v%d, %d, v%d" % (vT + 1, 16 * j, vN16))
        a("    v_mul_u32_u24 v%d, 205, v%d" % (vT + 2, vT + 1))
        a("    v_lshrrev_b32 v%d, 12, v%d                 ; /20" % (vT + 2, vT + 2))
        a("    v_mul_u32_u24 v%d, 20, v%d" % (vT + 3, vT + 2))
        a("    v_sub_u32 v%d, v%d, v%d" % (vT + 3, vT + 1, vT + 3))
        a("    v_mul_u32_u24 v%d, %d, v%d" % (vT + 2, LDS_PLANE, vT + 2))
        a("    v_lshl_add_u32 v%d, v%d, 4, v%d" % (vT + 3, vT + 3, vT + 2))
        a("    v_add_u32 v%d, v%d, v%d" % (vLw + j, vT + 3, vT))
    a("    v_lshlrev_b32 v%d, 2, v%d                    ; rs slot addr" % (vT + 11, vT + 4))
    a("    s_mov_b32 s%d, %d" % (sCnt, L_X))
    a("    v_mul_u32_u24 v%d, %d, v%d" % (vLr, LDS_PLANE, vG))
    a("    v_mul_u32_u24 v%d, %d, v%d" % (vT, LDS_ROW, vN16))
    a("    v_add3_u32 v%d, v%d, v%d, s%d" % (vLr, vLr, vT, sCnt))
    a("    v_and_b32 v%d, 1, v%d" % (vT + 8, vLane))
    a("    v_cmp_eq_u32 s[58:59], 0, v%d" % (vT + 8))
    a("    v_lshlrev_b32 v%d, 4, v%d" % (vT + 8, vT + 8))
    a("    v_and_b32 v%d, 2, v%d" % (vT + 9, vLane))
    a("    v_cmp_eq_u32 s[54:55], 0, v%d" % (vT + 9))
    a("    v_mov_b32 v%d, 0x3f80" % (vT + 9))
    a("    v_lshlrev_b32 v%d, v%d, v%d" % (vT + 9, vT + 8, vT + 9))
    a("    v_cndmask_b32 v%d, 0, v%d, s[54:55]" % (vAI, vT + 9))
    a("    v_cndmask_b32 v%d, v%d, 0, s[54:55]" % (vAI + 1, vT + 9))
    a("    v_mov_b32 v%d, 0x3f803f80" % vOne)
    a("    v_mov_b32 v%d, 0x3f803f80" % (vOne + 1))
    a("    v_cmp_eq_u32 s[56:57], 0, v%d" % vN16)
    code = autonop(o)
    for rg in range(4):
        o = []; a = o.append
        X = XB[rg]
        a("    s_waitcnt vmcnt(%d)" % (5 * (3 - rg) + 8 * PF))
        for i in range(10):
            o.append(mfma4(vSum, vOne, X + 2 * i, "0" if i == 0 else vSum))
            o.append(mfma4(vSq, X + 2 * i, X + 2 * i, "0" if i == 0 else vSq))
            a("    s_nop 0")
        a("    v_cndmask_b32 v%d, v%d, v%d, s[58:59]" % (vT + 2, vSq + 1, vSq))
        a("    v_cndmask_b32 v%d, v%d, v%d, s[58:59]" % (vT + 3, vSq + 3, vSq + 2))
        a("    v_cndmask_b32 v%d, v%d, v%d, s[54:55]" % (vT + 2, vT + 3, vT + 2))
        a("    v_mov_b32 v%d, v%d" % (vT, vSum))
        for sh in (8, 4, 2, 1):
            a("    v_add_f32_dpp v%d, v%d, v%d row_ror:%d row_mask:0xf bank_mask:0xf" % (vT, vT, vT, sh))
            a("    v_add_f32_dpp v%d, v%d, v%d row_ror:%d row_mask:0xf bank_mask:0xf" % (vT + 2, vT + 2, vT + 2, sh))
        a("    v_mul_f32 v%d, 0x%x, v%d                  ; mean" % (vT, f32bits(1.0 / 640), vT))
        o.append(cvt(vT + 1, "0", vT))
        for r in range(4): a("    v_sub_f32 v%d, 0, v%d" % (vNegM + r, vT + 1))
        a("    v_mul_f32 v%d, 0x%x, v%d                  ; E[x^2]" % (vT + 2, f32bits(1.0 / 640), vT + 2))
        a("    v_fma_f32 v%d, -v%d, v%d, v%d              ; var" % (vT + 2, vT, vT, vT + 2))
        stats = []
        b = stats.append
        b("    v_max_f32 v%d, 0, v%d" % (vT + 2, vT + 2))
        stats.append(cvt(vT + 2, "0", vT + 2))
        b("    v_add_f32 v%d, 0x%x, v%d" % (vT + 2, f32bits(1e-5), vT + 2))
        stats.append(cvt(vT + 2, "0", vT + 2))
        b("    v_sqrt_f32 v%d, v%d" % (vT + 2, vT + 2))
        b("    s_nop 0")
        stats.append(cvt(vT + 2, "0", vT + 2))
        b("    v_rcp_f32 v%d, v%d" % (vT + 3, vT + 2))
        b("    s_nop 0")
        b("    v_fma_f32 v%d, -v%d, v%d, 1.0" % (vT + 4, vT + 2, vT + 3))
        b("    v_fma_f32 v%d, v%d, v%d, v%d" % (vT + 3, vT + 4, vT + 3, vT + 3))
        def D(i): return vD + 4 * (i & 3)
        seq = []
        for i in range(10 + 2):
            if i < 10: seq.append(mfma4(D(i), vAI, X + 2 * i, vNegM))
            if stats: seq.append(stats.pop(0))
            if i >= 2:
                seq += [cvt(X + 2 * (i - 2), D(i - 2), D(i - 2) + 1), cvt(X + 2 * (i - 2) + 1, D(i - 2) + 2, D(i - 2) + 3)]
                if (i - 2) & 1:
                    j = (i - 2) >> 1
                    seq.append("    ds_write_b128 v%d, %s offset:%d" % (vLw + j, V(X + 4 * j, 4), rg * 4 * LDS_ROW))
        o += seq + stats
        a("    s_mov_b64 exec, s[56:57]")
        a("    ds_write_b32 v%d, v%d offset:%d" % (vT + 11, vT + 3, L_RS + 16 * rg))
        a("    s_mov_b64 exec, -1")
        code += autonop(o)
    o = []; a = o.append
    a("    s_waitcnt lgkmcnt(0)")
    a("    s_barrier")
    a("    s_cmp_ge_u32 s%d, 30" % sWi)
    a("    s_cbranch_scc1 LK1_xn")
    a("    s_cmp_ge_u32 s%d, 20" % sWi)
    a("    s_cbranch_scc1 LK1_gemmV")
    code += o
    def gemm(vtype, lab):
        def xreads(par, off):
            b = vXf + 16 * par
            return ["    ds_read_b128 %s, v%d offset:%d" % (V(b + 4 * rt, 4), vLr, rt * 16 * LDS_ROW + off) for rt in range(4)]
        def step(i, last):
            o = []; a = o.append
            par = i & 1
            raw = vWraw + 16 * i
            a("    s_waitcnt vmcnt(%d)" % (8 * (PF - 1 - i) if last else 8 * (PF - 1)))
            for t in range(4):
                for p in range(4):
                    a("    v_perm_b32 v%d, v%d, v%d, s%d" % (vFr + 4 * t + p, raw + 2 * (2 * p + 1) + (t >> 1), raw + 2 * (2 * p) + (t >> 1), sSelHi if t & 1 else sSelLo))
            if not last: o += wloads(i)
            if not (last and i == PF - 1):
                o += xreads(par ^ 1, 16 * (i + 1))
                a("    s_waitcnt lgkmcnt(4)")
            else:
                a("    s_waitcnt lgkmcnt(0)")
            xb = vXf + 16 * par
            for t in range(4):
                for rt in range(4):
                    acc = vAcc + 16 * rt + 4 * t
                    if vtype: o.append(m16(acc, xb + 4 * rt, vFr + 4 * t, acc))
                    else: o.append(m16(acc, vFr + 4 * t, xb + 4 * rt, acc))
            return o
        pre = xreads(0, 0) + ["    v_mov_b32 v%d, 0" % (vAcc + r) for r in range(64)] + ["    s_mov_b32 s%d, %d" % (sCnt, 20 // PF - 1)]
        body = []
        for i in range(PF): body += step(i, False)
        body += ["    v_add_u32 v%d, %d, v%d" % (vLr, 16 * PF, vLr), "    s_sub_u32 s%d, s%d, 1" % (sCnt, sCnt), "    s_cmp_lg_u32 s%d, 0" % sCnt, "    s_cbranch_scc1 LK1_loop%s" % lab]
        assert not check(body + body), check(body + body)
        tail = []
        for i in range(PF): tail += step(i, True)
        return pre + ["LK1_loop%s:" % lab] + body + tail
    o = gemm(False, "qk"); a = o.append
    a("    v_lshlrev_b32 v%d, 2, v%d" % (vT, vN16))
    for rt in range(4): a("    ds_read_b32 v%d, v%d offset:%d" % (vT + 4 + rt, vT, L_RS + 64 * rt))
    a("    s_lshl_b32 s%d, s%d, 6                      ; token base" % (sT, sRB))
    a("    s_cmp_ge_u32 s%d, 10" % sWi)
    a("    s_cbranch_scc1 LK1_epiK")
    a("    v_add_u32 v%d, s%d, v%d" % (vT, sT, vN16))
    a("    v_mul_u32_u24 v%d, 0x500, v%d" % (vT, vT))
    a("    v_lshl_add_u32 v%d, v%d, 5, v%d" % (vT, vG, vT))
    a("    s_lshl_b32 s%d, s%d, 7" % (sT + 4, sWi))
    a("    s_add_u32 s%d, s%d, %d" % (sT + 4, sT + 4, WS_Q))
    a("    s_waitcnt lgkmcnt(0)")
    for rt in range(4): a("    v_mul_f32 v%d, 0x%x, v%d" % (vT + 4 + rt, f32bits(QSCALE), vT + 4 + rt))
    def scale_pack_qk(rt):
        r_ = []
        pk = vFr + 8 * (rt & 1)
        for q in range(16): r_.append("    v_mul_f32 v%d, v%d, v%d" % (vAcc + 16 * rt + q, vAcc + 16 * rt + q, vT + 4 + rt))
        for r in range(4):
            r_.append(cvt(pk + 2 * r, vAcc + 16 * rt + r, vAcc + 16 * rt + 4 + r))
            r_.append(cvt(pk + 2 * r + 1, vAcc + 16 * rt + 8 + r, vAcc + 16 * rt + 12 + r))
        return r_, pk
    for rt in range(4):
        r_, pk = scale_pack_qk(rt); o += r_
        a("    buffer_store_dwordx4 %s, v%d, %s, s%d offen" % (V(pk, 4), vT, S(sWS, 4), sT + 4))
        a("    buffer_store_dwordx4 %s, v%d, %s, s%d offen offset:16" % (V(pk + 4, 4), vT, S(sWS, 4), sT + 4))
        a("    s_add_u32 s%d, s%d, %d" % (sT + 4, sT + 4, 16 * ROWB))
    a("    s_endpgm")
    a("LK1_epiK:")
    a("    s_sub_u32 s%d, s%d, 10" % (sT + 4, sWi))
    a("    s_lshl_b32 s%d, s%d, 4" % (sT + 4, sT + 4))
    a("    v_lshl_add_u32 v%d, v%d, 2, s%d             ; c4 = base + 4g" % (vT, vG, sT + 4))
    a("    s_mov_b32 s%d, %d" % (sT + 5, KV_HEAD))
    for r in range(4):
        a("    v_add_u32 v%d, %d, v%d" % (vT + 1, r, vT))
        a("    v_mul_u32_u24 v%d, 205, v%d" % (vT + 2, vT + 1))
        a("    v_lshrrev_b32 v%d, 10, v%d                 ; head = c4/5" % (vT + 2, vT + 2))
        a("    v_mul_u32_u24 v%d, 5, v%d" % (vT + 3, vT + 2))
        a("    v_sub_u32 v%d, v%d, v%d                    ; dg" % (vT + 3, vT + 1, vT + 3))
        a("    v_mul_lo_u32 v%d, v%d, s%d" % (vT + 2, vT + 2, sT + 5))
        a("    v_lshrrev_b32 v%d, 1, v%d" % (vT + 8, vT + 3))
        a("    v_lshlrev_b32 v%d, 9, v%d" % (vT + 8, vT + 8))
        a("    v_and_b32 v%d, 1, v%d" % (vT + 9, vT + 3))
        a("    v_lshl_add_u32 v%d, v%d, 3, v%d" % (vT + 8, vT + 9, vT + 8))
        a("    v_add_u32 v%d, v%d, v%d" % (vT + 2, vT + 2, vT + 8))
        a("    v_cmp_eq_u32 vcc, 4, v%d" % (vT + 3))
        a("    v_mov_b32 v%d, 16" % (vT + 9))
        a("    v_cndmask_b32 v%d, v%d, 8, vcc" % (vT + 9, vT + 9))
        a("    v_mul_u32_u24 v%d, v%d, v%d" % (vT + 8, vT + 9, vN16))
        a("    v_add_u32 v%d, v%d, v%d" % (vD + 2 * r, vT + 2, vT + 8))
        a("    v_lshl_add_u32 v%d, v%d, 4, v%d" % (vD + 2 * r + 1, vT + 9, vD + 2 * r))
    a("    s_mul_i32 s%d, s%d, %d" % (sT + 4, sRB, 2 * KV_REC))
    a("    s_add_u32 s%d, s%d, %d" % (sT + 4, sT + 4, WS_KV))
    a("    s_waitcnt lgkmcnt(0)")
    for rt in range(4):
        r_, pk = scale_pack_qk(rt); o += r_
        for r in range(4):
            a("    buffer_store_dwordx2 %s, v%d, %s, s%d offen offset:%d" % (V(pk + 2 * r, 2), vD + 2 * r + (rt & 1), S(sWS, 4), sT + 4, (rt >> 1) * KV_REC))
    a("    s_endpgm")
    code += autonop(o)
    o = ["LK1_gemmV:"] + gemm(True, "v"); a = o.append
    a("    v_lshlrev_b32 v%d, 4, v%d" % (vT, vG))
    for rt in range(4): a("    ds_read_b128 %s, v%d offset:%d" % (V(vD + 4 * rt, 4), vT, L_RS + 64 * rt))
    a("    s_sub_u32 s%d, s%d, 20" % (sT + 4, sWi))
    a("    s_lshl_b32 s%d, s%d, 4" % (sT + 4, sT + 4))
    a("    v_add_u32 v%d, s%d, v%d                    ; c4" % (vT, sT + 4, vN16))
    a("    v_mul_u32_u24 v%d, 205, v%d" % (vT + 2, vT))
    a("    v_lshrrev_b32 v%d, 10, v%d                 ; head" % (vT + 2, vT + 2))
    a("    v_mul_u32_u24 v%d, 5, v%d" % (vT + 3, vT + 2))
    a("    v_sub_u32 v%d, v%d, v%d                    ; dg" % (vT + 3, vT, vT + 3))
    a("    s_mov_b32 s%d, %d" % (sT + 5, KV_HEAD))
    a("    v_mul_lo_u32 v%d, v%d, s%d" % (vT + 2, vT + 2, sT + 5))
    a("    v_lshl_add_u32 v%d, v%d, 6, v%d" % (vT + 2, vT + 3, vT + 2))
    a("    v_and_b32 v%d, 1, v%d" % (vT + 4, vG))
    a("    v_mul_u32_u24 v%d, 320, v%d" % (vT + 4, vT + 4))
    a("    v_add_u32 v%d, v%d, v%d" % (vT + 2, vT + 2, vT + 4))
    a("    v_lshrrev_b32 v%d, 1, v%d" % (vT + 4, vG))
    a("    v_lshl_add_u32 v%d, v%d, 3, v%d" % (vT + 2, vT + 4, vT + 2))
    a("    s_mul_i32 s%d, s%d, %d" % (sT + 4, sRB, 2 * KV_REC))
    a("    s_add_u32 s%d, s%d, %d" % (sT + 4, sT + 4, WS_KV + 1280))
    a("    s_add_u32 s%d, s%d, %d" % (sT + 5, sT + 4, KV_REC))
    a("    s_waitcnt lgkmcnt(0)")
    for rt in range(4):
        pk = vFr + 8 * (rt & 1)
        for t in range(4):
            acc = vAcc + 16 * rt + 4 * t
            for r in range(4): a("    v_mul_f32 v%d, v%d, v%d" % (acc + r, acc + r, vD + 4 * rt + r))
            o.append(cvt(pk + 2 * t, acc, acc + 1))
            o.append(cvt(pk + 2 * t + 1, acc + 2, acc + 3))
        for t in range(4):
            a("    buffer_store_dwordx2 %s, v%d, %s, s%d offen offset:%d" % (V(pk + 2 * t, 2), vT + 2, S(sWS, 4), sT + 4 + (rt >> 1), (rt & 1) * 640 + 16 * t))
    a("    s_endpgm")
    code += autonop(o)
    o = ["LK1_xn:"]; a = o.append
    vWR = 96; X = 40; vA1, vA2, vA3 = 120, 122, 124
    a("    v_lshlrev_b32 v%d, 4, v%d" % (vT, vN16))
    for j in range(5):
        a("    buffer_load_dwordx4 %s, v%d, %s, 0 offen offset:%d" % (V(vWR + 4 * j, 4), vT, S(sWr, 4), 256 * j))
    a("    s_sub_u32 s%d, s%d, 30" % (sT + 4, sWi))
    a("    s_lshl_b32 s%d, s%d, 5" % (sT + 4, sT + 4))
    a("    s_sub_i32 s%d, s%d, s%d                     ; delta rows (signed)" % (sT + 4, sT + 4, sT + 1))
    a("    s_mul_i32 s%d, s%d, %d" % (sT + 5, sT + 4, LDS_ROW))
    for j in range(5): a("    v_add_u32 v%d, s%d, v%d" % (vLw + j, sT + 5, vLw + j))
    a("    s_mul_i32 s%d, s%d, %d" % (sT + 5, sT + 4, ROWB))
    a("    v_add_u32 v%d, s%d, v%d" % (vXoff, sT + 5, vXoff))
    a("    s_lshl_b32 s%d, s%d, 2" % (sT + 5, sT + 4))
    a("    v_add_u32 v%d, s%d, v%d" % (vT + 11, sT + 5, vT + 11))
    a("    s_lshl_b32 s%d, s%d, 8" % (sT + 5, sRB))
    a("    s_add_u32 s%d, s%d, %d                      ; r soffset" % (sT + 5, sT + 5, WS_R))
    a("    s_mov_b32 s%d, %d" % (sT + 4, WS_XN))
    a("    s_mov_b32 s%d, 8" % sCnt)
    a("LK1_xn_loop:")
    a("    ds_read_b32 v%d, v%d offset:%d" % (vT + 3, vT + 11, L_RS))
    for j in range(5): a("    ds_read_b128 %s, v%d" % (V(X + 4 * j, 4), vLw + j))
    a("    s_waitcnt lgkmcnt(5)")
    o.append(cvt(vT + 4, "0", vT + 3))
    a("    v_sub_f32 v%d, v%d, v%d" % (vT + 3, vT + 3, vT + 4))
    o.append(cvt(vT + 5, "0", vT + 3))
    a("    v_sub_f32 v%d, v%d, v%d" % (vT + 3, vT + 3, vT + 5))
    o.append(cvt(vT + 6, "0", vT + 3))
    for reg, src in ((vA1, vT + 4), (vA2, vT + 5), (vA3, vT + 6)):
        a("    v_lshrrev_b32 v%d, 16, v%d" % (src, src))
        a("    v_lshlrev_b32 v%d, v%d, v%d" % (src, vT + 8, src))
        a("    v_cndmask_b32 v%d, 0, v%d, s[54:55]" % (reg, src))
        a("    v_cndmask_b32 v%d, v%d, 0, s[54:55]" % (reg + 1, src))
    a("    s_waitcnt lgkmcnt(0)")
    def D(i): return vD + 4 * (i & 3)
    for i in range(10 + 2):
        s3 = [mfma4(D(i), vA1, X + 2 * i, "0"), mfma4(D(i), vA2, X + 2 * i, D(i)), mfma4(D(i), vA3, X + 2 * i, D(i))] if i < 10 else []
        s4 = [cvt(X + 2 * (i - 2), D(i - 2), D(i - 2) + 1), cvt(X + 2 * (i - 2) + 1, D(i - 2) + 2, D(i - 2) + 3)] if i >= 2 else []
        for q in range(3):
            if q < len(s3): o.append(s3[q])
            if q < len(s4): o.append(s4[q])
    for j in range(5):
        a("    buffer_store_dwordx4 %s, v%d, %s, s%d offen offset:%d" % (V(X + 4 * j, 4), vXoff, S(sWS, 4), sT + 4, 256 * j))
    a("    v_mov_b32 v%d, 0" % vT); a("    v_mov_b32 v%d, 0" % (vT + 1))
    a("    s_waitcnt vmcnt(5)")
    for i in range(20):
        a("    v_dot2c_f32_bf16 v%d, v%d, v%d" % (vT + (i & 1), X + i, vWR + i))
    a("    s_nop 2")
    a("    v_add_f32 v%d, v%d, v%d" % (vT, vT, vT + 1))
    for sh in (8, 4, 2, 1):
        a("    v_add_f32_dpp v%d, v%d, v%d row_ror:%d row_mask:0xf bank_mask:0xf" % (vT, vT, vT, sh))
    o.append(cvt(vT, "0", vT))
    a("    s_mov_b64 exec, s[56:57]")
    a("    buffer_store_dword v%d, v%d, %s, s%d offen" % (vT, vT + 11, S(sWS, 4), sT + 5))
    a("    s_mov_b64 exec, -1")
    for j in range(5): a("    v_add_u32 v%d, %d, v%d" % (vLw + j, 4 * LDS_ROW, vLw + j))
    a("    v_add_u32 v%d, %d, v%d" % (vXoff, 4 * ROWB, vXoff))
    a("    v_add_u32 v%d, 16, v%d" % (vT + 11, vT + 11))
    a("    s_sub_u32 s%d, s%d, 1" % (sCnt, sCnt))
    a("    s_cmp_lg_u32 s%d, 0" % sCnt)
    a("    s_nop 3")
    a("    s_cbranch_scc1 LK1_xn_loop")
    a("LK1_exit:")
    a("    s_endpgm")
    code += autonop(o)
    return code
```

```python
from asmlib import *
from common import *
import gen_attn2 as A

NMOE = 32
GRID = NMOE + 256
MOE_PART = WS_MOE + 4096
K2_LDS = A.ATT_LDS
L_XS = 0
L_RED = 2560
L_HM = 6656
L_TOP = 6912

def perms(dst, raw, tpair, sLo, sHi):
    o = []
    for tt in range(2):
        for p in range(4):
            o.append("    v_perm_b32 v%d, v%d, v%d, s%d" % (dst + 4 * tt + p, raw + 2 * (2 * p + 1) + tpair, raw + 2 * (2 * p) + tpair, sHi if tt else sLo))
    return o

def moe_code():
    o = []; a = o.append
    sWS, sG, sD = 4, 8, 16
    sP, sWv, sK0, sK1 = 20, 21, 22, 23
    sT = 24; sLo, sHi = 30, 31
    vT = 1
    vN16, vG = 10, 11
    vAcc = 12
    vFr = 28
    vB = 36
    vW = 40
    vR = 120
    a("    s_cmp_ge_u32 s2, 27")
    a("    s_cbranch_scc1 LM_wo")
    a("    s_load_dwordx4 s[44:47], s[0:1], 40")
    a("    s_load_dwordx2 s[48:49], s[0:1], 56          ; down")
    a("    s_load_dwordx2 s[52:53], s[0:1], 80          ; ws")
    a("    s_mov_b32 s%d, s2" % sP)
    a("    v_lshrrev_b32 v%d, 6, v0" % vT)
    a("    v_and_b32 v%d, 15, v0" % vN16)
    a("    v_bfe_u32 v%d, v0, 4, 2" % vG)
    a("    v_readfirstlane_b32 s%d, v%d                ; wave" % (sWv, vT))
    a("    s_mov_b32 s%d, 0x05040100" % sLo)
    a("    s_mov_b32 s%d, 0x07060302" % sHi)
    a("    v_mul_u32_u24 v%d, %d, v%d" % (vT + 3, 8 * 3456, vG))
    a("    v_lshl_add_u32 v%d, v%d, 3, v%d" % (vT + 3, vN16, vT + 3))
    a("    v_lshlrev_b32 v%d, 4, v0" % (vT + 4))
    a("    s_and_b32 s%d, s%d, 3                       ; kq" % (sT + 4, sWv))
    a("    s_mul_i32 s%d, s%d, %d" % (sT, sT + 4, 160 * 3456))
    a("    s_lshl_b32 s%d, s%d, 7" % (sT + 1, sP))
    a("    s_add_u32 s%d, s%d, s%d" % (sT, sT, sT + 1))
    a("    s_waitcnt lgkmcnt(0)")
    a("    s_cmp_ge_u32 s%d, 4" % sWv)
    a("    s_cselect_b32 s%d, s46, s44" % sG)
    a("    s_cselect_b32 s%d, s47, s45" % (sG + 1))
    a("    s_mov_b32 s%d, %d" % (sG + 2, 640 * 3456)); a("    s_mov_b32 s%d, 0x00020000" % (sG + 3))
    for srd, p, n in ((sD, 48, 1728 * 1280), (sWS, 52, 0x1000000)):
        a("    s_mov_b32 s%d, s%d" % (srd, p)); a("    s_mov_b32 s%d, s%d" % (srd + 1, p + 1))
        a("    s_mov_b32 s%d, %d" % (srd + 2, n)); a("    s_mov_b32 s%d, 0x00020000" % (srd + 3))
    a("    s_mov_b32 s%d, %d" % (sT + 1, WS_R))
    a("    buffer_load_dwordx4 %s, v%d, %s, s%d offen" % (V(vR, 4), vT + 4, S(sWS, 4), sT + 1))
    for s in range(5):
        for j in range(8):
            a("    buffer_load_dwordx2 %s, v%d, %s, s%d offen%s" % (V(vW + 16 * s + 2 * j, 2), vT + 3, S(sG, 4), sT, " offset:3456" if j & 1 else ""))
            if j & 1: a("    s_add_u32 s%d, s%d, %d" % (sT, sT, 2 * 3456 if j < 7 else (2 + 24) * 3456))
    a("    s_waitcnt vmcnt(40)")
    a("    v_lshlrev_b32 v%d, 2, v0" % (vT + 4))
    a("    v_sub_u32 v%d, 2047, v%d" % (vT + 4, vT + 4))
    for i in range(4):
        x = vR + i
        a("    v_ashrrev_i32 v%d, 31, v%d" % (vT + 5, x))
        a("    v_or_b32 v%d, 0x80000000, v%d" % (vT + 5, vT + 5))
        a("    v_xor_b32 v%d, v%d, v%d" % (x, x, vT + 5))
        a("    v_and_b32 v%d, 0xffff0000, v%d" % (x, x))
        a("    v_subrev_u32 v%d, %d, v%d" % (vT + 5, i, vT + 4))
        a("    v_or_b32 v%d, v%d, v%d" % (x, x, vT + 5))
    a("    v_mov_b32 v%d, 0" % (vT + 8))
    a("    v_lshlrev_b32 v%d, 2, v%d" % (vT + 6, vT))
    for rnd in range(2):
        a("    v_max_u32 v%d, v%d, v%d" % (vT + 5, vR, vR + 1))
        a("    v_max3_u32 v%d, v%d, v%d, v%d" % (vT + 5, vT + 5, vR + 2, vR + 3))
        for sh in (8, 4, 2, 1):
            a("    v_max_u32_dpp v%d, v%d, v%d row_ror:%d row_mask:0xf bank_mask:0xf" % (vT + 5, vT + 5, vT + 5, sh))
        for q in range(4):
            a("    v_readlane_b32 s%d, v%d, %d" % (sT + q, vT + 5, 16 * q))
        a("    s_nop 1")
        a("    s_max_u32 s%d, s%d, s%d" % (sT, sT, sT + 1))
        a("    s_max_u32 s%d, s%d, s%d" % (sT + 2, sT + 2, sT + 3))
        a("    s_max_u32 s%d, s%d, s%d" % (sT, sT, sT + 2))
        a("    v_mov_b32 v%d, s%d" % (vT + 5, sT))
        a("    ds_write_b32 v%d, v%d offset:%d" % (vT + 6, vT + 5, L_TOP + 32 * rnd))
        a("    s_waitcnt lgkmcnt(0)")
        a("    s_barrier")
        a("    ds_read_b128 %s, v%d offset:%d" % (V(vFr, 4), vT + 8, L_TOP + 32 * rnd))
        a("    ds_read_b128 %s, v%d offset:%d" % (V(vFr + 4, 4), vT + 8, L_TOP + 32 * rnd + 16))
        a("    s_waitcnt lgkmcnt(0)")
        a("    v_max3_u32 v%d, v%d, v%d, v%d" % (vT + 5, vFr, vFr + 1, vFr + 2))
        a("    v_max3_u32 v%d, v%d, v%d, v%d" % (vT + 5, vT + 5, vFr + 3, vFr + 4))
        a("    v_max3_u32 v%d, v%d, v%d, v%d" % (vT + 5, vT + 5, vFr + 5, vFr + 6))
        a("    v_max_u32 v%d, v%d, v%d" % (vT + 5, vT + 5, vFr + 7))
        a("    v_readfirstlane_b32 s%d, v%d" % (sK0 + rnd, vT + 5))
        if rnd == 0:
            for i in range(4):
                a("    v_cmp_eq_u32 vcc, v%d, v%d" % (vR + i, vT + 5))
                a("    v_cndmask_b32 v%d, v%d, 0, vcc" % (vR + i, vR + i))
    a("    s_nop 3")
    for rnd in range(2):
        a("    s_and_b32 s%d, s%d, 0x7ff" % (sT + rnd, sK0 + rnd))
        a("    s_sub_u32 s%d, 2047, s%d                    ; idx" % (sT + rnd, sT + rnd))
    a("    v_cmp_gt_u32 vcc, 160, v0")
    a("    s_and_saveexec_b64 s[34:35], vcc")
    a("    s_cbranch_execz LM_noxs")
    a("    v_cmp_le_u32 vcc, 80, v0")
    a("    v_mov_b32 v%d, s%d" % (vT + 5, sT))
    a("    v_mov_b32 v%d, s%d" % (vT + 6, sT + 1))
    a("    v_cndmask_b32 v%d, v%d, v%d, vcc" % (vT + 5, vT + 5, vT + 6))
    a("    v_subrev_u32 v%d, 80, v0" % (vT + 6))
    a("    v_cndmask_b32 v%d, v0, v%d, vcc" % (vT + 6, vT + 6))
    a("    v_mul_u32_u24 v%d, 0x500, v%d" % (vT + 5, vT + 5))
    a("    v_lshl_add_u32 v%d, v%d, 4, v%d" % (vT + 5, vT + 6, vT + 5))
    a("    s_mov_b32 s%d, %d" % (sT + 2, WS_XN))
    a("    buffer_load_dwordx4 %s, v%d, %s, s%d offen" % (V(vR, 4), vT + 5, S(sWS, 4), sT + 2))
    a("    v_lshlrev_b32 v%d, 4, v0" % (vT + 6))
    a("    s_waitcnt vmcnt(0)")
    a("    ds_write_b128 v%d, %s offset:%d" % (vT + 6, V(vR, 4), L_XS))
    a("LM_noxs:")
    a("    s_mov_b64 exec, s[34:35]")
    a("    s_or_b32 s%d, s%d, s%d" % (sT + 2, sP, sWv))
    a("    s_cmp_lg_u32 s%d, 0" % (sT + 2))
    a("    s_cbranch_scc1 LM_nohdr")
    for rnd in range(2):
        a("    s_and_b32 s%d, s%d, 0xffff0000" % (sT + 2, sK0 + rnd))
        a("    s_ashr_i32 s%d, s%d, 31" % (sT + 3, sT + 2))
        a("    s_not_b32 s%d, s%d" % (sT + 3, sT + 3))
        a("    s_or_b32 s%d, s%d, 0x80000000" % (sT + 3, sT + 3))
        a("    s_xor_b32 s%d, s%d, s%d" % (sT + 2, sT + 2, sT + 3))
        a("    s_and_b32 s%d, s%d, 0xffff0000" % (sT + 2, sT + 2))
        x = vFr + 2 + rnd
        a("    v_mov_b32 v%d, s%d" % (x, sT + 2))
        a("    v_mul_f32 v%d, 0x%x, v%d" % (x, f32bits(-LOG2E), x))
        a("    v_exp_f32 v%d, v%d" % (x, x))
        a("    v_add_f32 v%d, 1.0, v%d" % (x, x))
        a("    v_rcp_f32 v%d, v%d" % (x, x))
        o.append(cvt(x, "0", x))
        a("    v_mov_b32 v%d, s%d" % (vFr + rnd, sT + rnd))
    a("    v_mov_b32 v%d, %d" % (vT + 5, WS_MOE))
    a("    s_mov_b64 exec, 1")
    a("    buffer_store_dwordx4 %s, v%d, %s, 0 offen" % (V(vFr, 4), vT + 5, S(sWS, 4)))
    a("    s_mov_b64 exec, -1")
    a("    s_nop 1")
    a("LM_nohdr:")
    a("    s_waitcnt vmcnt(0) lgkmcnt(0)")
    a("    s_barrier")
    a("    v_and_b32 v%d, 1, v%d" % (vT + 5, vN16))
    a("    v_mul_u32_u24 v%d, 0x500, v%d" % (vT + 6, vT + 5))
    a("    v_lshl_add_u32 v%d, v%d, 4, v%d" % (vT + 6, vG, vT + 6))
    a("    s_mul_i32 s%d, s%d, 320" % (sT + 2, sT + 4))
    a("    v_add_u32 v%d, s%d, v%d" % (vT + 6, sT + 2, vT + 6))
    for s in range(5):
        a("    ds_read_b128 %s, v%d offset:%d" % (V(vB, 4), vT + 6, L_XS + 64 * s))
        for tp in range(2):
            o += perms(vFr, vW + 16 * s, tp, sLo, sHi)
            if tp == 0: a("    s_waitcnt lgkmcnt(0)")
            for tt in range(2):
                acc = vAcc + 4 * (2 * tp + tt)
                o.append(m16(acc, vFr + 4 * tt, vB, "0" if s == 0 else acc))
    a("    v_mul_u32_u24 v%d, %d, v%d" % (vT + 3, 8 * 1280, vG))
    a("    v_lshl_add_u32 v%d, v%d, 3, v%d" % (vT + 3, vN16, vT + 3))
    a("    s_mul_i32 s%d, s%d, %d" % (sT + 2, sP, 64 * 1280))
    a("    s_lshl_b32 s%d, s%d, 7" % (sT + 3, sWv))
    a("    s_add_u32 s%d, s%d, s%d" % (sT + 2, sT + 2, sT + 3))
    def dloads(bi):
        r = []
        for s in range(2):
            for jh in range(2):
                r.append("    s_add_u32 s%d, s%d, %d" % (sT + 3, sT + 2, (32 * s + 4 * jh) * 1280 + 1024 * bi))
                for jl in range(4):
                    j = 4 * jh + jl
                    r.append("    buffer_load_dwordx2 %s, v%d, %s, s%d offen offset:%d" % (V(vW + 32 * bi + 16 * s + 2 * j, 2), vT + 3, S(sD, 4), sT + 3, 1280 * jl))
        return r
    o += dloads(0)
    a("    s_cmp_ge_u32 s%d, 2" % sWv)
    a("    s_cbranch_scc1 LM_nod1")
    o += dloads(1)
    a("LM_nod1:")
    a("    v_lshlrev_b32 v%d, 8, v%d" % (vT + 6, vN16))
    a("    v_lshl_add_u32 v%d, v%d, 6, v%d" % (vT + 6, vG, vT + 6))
    a("    s_lshl_b32 s%d, s%d, 9" % (sT + 3, sWv))
    a("    v_add_u32 v%d, s%d, v%d" % (vT + 6, sT + 3, vT + 6))
    a("    v_cmp_gt_u32 s[32:33], 2, v%d" % vN16)
    a("    s_nop 7")
    a("    s_mov_b64 exec, s[32:33]")
    for t in range(4):
        for r in range(4):
            a("    ds_write_b32 v%d, v%d offset:%d" % (vT + 6, vAcc + 4 * t + r, L_RED + 16 * r + 4 * t))
    a("    s_mov_b64 exec, -1")
    a("    s_waitcnt lgkmcnt(0)")
    a("    s_barrier")
    a("    s_cmp_ge_u32 s%d, 2" % sWv)
    a("    s_cbranch_scc1 LM_nored")
    a("    v_lshlrev_b32 v%d, 2, v0" % (vT + 5))
    for q in range(8):
        a("    ds_read_b32 v%d, v%d offset:%d" % (vR + q, vT + 5, L_RED + 512 * q))
    a("    s_waitcnt lgkmcnt(0)")
    for m in range(2):
        a("    v_add_f32 v%d, v%d, v%d" % (vR + 4 * m, vR + 4 * m, vR + 4 * m + 1))
        a("    v_add_f32 v%d, v%d, v%d" % (vR + 4 * m + 2, vR + 4 * m + 2, vR + 4 * m + 3))
        a("    v_add_f32 v%d, v%d, v%d" % (vR + 4 * m, vR + 4 * m, vR + 4 * m + 2))
        o.append(cvt(vR + 4 * m, "0", vR + 4 * m))
    x = vR + 1
    a("    v_mul_f32 v%d, 0x%x, v%d" % (x, f32bits(-LOG2E), vR))
    a("    v_exp_f32 v%d, v%d" % (x, x))
    a("    v_add_f32 v%d, 1.0, v%d" % (x, x))
    a("    v_rcp_f32 v%d, v%d" % (x, x))
    a("    v_mul_f32 v%d, v%d, v%d" % (x, x, vR))
    o.append(cvt(x, "0", x))
    a("    v_mul_f32 v%d, v%d, v%d" % (x, x, vR + 4))
    o.append(cvt(x, x, "0"))
    a("    v_lshlrev_b32 v%d, 1, v0" % (vT + 5))
    a("    ds_write_b16 v%d, v%d offset:%d" % (vT + 5, x, L_HM))
    a("    s_waitcnt lgkmcnt(0)")
    a("LM_nored:")
    a("    s_barrier")
    a("    v_and_b32 v%d, 1, v%d" % (vT + 5, vN16))
    a("    v_lshlrev_b32 v%d, 7, v%d" % (vT + 6, vT + 5))
    a("    v_lshl_add_u32 v%d, v%d, 4, v%d" % (vT + 6, vG, vT + 6))
    a("    ds_read_b128 %s, v%d offset:%d" % (V(vB, 4), vT + 6, L_HM))
    a("    ds_read_b128 %s, v%d offset:%d" % (V(vR, 4), vT + 6, L_HM + 64))
    a("    v_mul_u32_u24 v%d, 2560, v%d" % (vT + 5, vN16))
    a("    v_lshl_add_u32 v%d, v%d, 6, v%d" % (vT + 5, vG, vT + 5))
    a("    s_mul_i32 s%d, s%d, 5120" % (sT + 2, sP))
    a("    s_lshl_b32 s%d, s%d, 8" % (sT + 3, sWv))
    a("    s_add_u32 s%d, s%d, s%d" % (sT + 2, sT + 2, sT + 3))
    a("    s_add_u32 s%d, s%d, %d" % (sT + 2, sT + 2, MOE_PART))
    a("    s_waitcnt vmcnt(0) lgkmcnt(0)")
    for bi in range(2):
        if bi == 1:
            a("    s_cmp_ge_u32 s%d, 2" % sWv)
            a("    s_cbranch_scc1 LM_exit")
        for s in range(2):
            for tp in range(2):
                o += perms(vFr, vW + 32 * bi + 16 * s, tp, sLo, sHi)
                for tt in range(2):
                    acc = vAcc + 4 * (2 * tp + tt)
                    o.append(m16(acc, vFr + 4 * tt, vB if s == 0 else vR, "0" if s == 0 else acc))
        a("    s_nop 7")
        a("    s_mov_b64 exec, s[32:33]")
        for t in range(4):
            for r in range(4):
                a("    buffer_store_dword v%d, v%d, %s, s%d offen offset:%d" % (vAcc + 4 * t + r, vT + 5, S(sWS, 4), sT + 2, 2048 * bi + 16 * r + 4 * t))
        a("    s_mov_b64 exec, -1")
    a("    s_endpgm")
    a("LM_wo:")
    a("    s_load_dwordx2 s[48:49], s[0:1], 16          ; wo")
    a("    s_load_dwordx2 s[52:53], s[0:1], 80          ; ws")
    a("    v_lshrrev_b32 v%d, 6, v0" % vT)
    a("    v_and_b32 v%d, 15, v0" % vN16)
    a("    v_bfe_u32 v%d, v0, 4, 2" % vG)
    a("    v_readfirstlane_b32 s%d, v%d" % (sWv, vT))
    a("    v_mul_u32_u24 v%d, %d, v%d" % (vT + 3, 8 * 1280, vG))
    a("    v_lshl_add_u32 v%d, v%d, 1, v%d" % (vT + 3, vN16, vT + 3))
    a("    v_and_b32 v%d, 63, v0" % (vT + 4))
    a("    v_lshlrev_b32 v%d, 4, v%d" % (vT + 4, vT + 4))
    a("    s_sub_u32 s%d, s2, 27" % sP)
    a("    s_lshl_b32 s%d, s%d, 3" % (sP, sP))
    a("    s_add_u32 s%d, s%d, s%d" % (sP, sP, sWv))
    a("    s_lshl_b32 s%d, s%d, 2                      ; q0 = hw*4" % (sP, sP))
    a("    s_add_u32 s%d, s%d, 4" % (sK0, sP))
    a("    s_waitcnt lgkmcnt(0)")
    for srd, p, n in ((sD, 48, 640 * 1280), (sWS, 52, 0x1000000)):
        a("    s_mov_b32 s%d, s%d" % (srd, p)); a("    s_mov_b32 s%d, s%d" % (srd + 1, p + 1))
        a("    s_mov_b32 s%d, %d" % (srd + 2, n)); a("    s_mov_b32 s%d, 0x00020000" % (srd + 3))
    a("LM_wo_loop:")
    a("    s_mul_i32 s%d, s%d, 52429" % (sT + 4, sP))
    a("    s_lshr_b32 s%d, s%d, 18                     ; cbw = q/5" % (sT + 4, sT + 4))
    a("    s_mul_i32 s%d, s%d, 5" % (sT + 5, sT + 4))
    a("    s_sub_u32 s%d, s%d, s%d                     ; s" % (sT + 1, sP, sT + 5))
    a("    s_and_b32 s%d, s%d, 3" % (sT + 5, sT + 4))
    a("    s_lshr_b32 s%d, s%d, 2" % (sT + 4, sT + 4))
    a("    s_mul_i32 s%d, s%d, %d" % (sT + 5, sT + 5, 160 * 1280))
    a("    s_mul_i32 s%d, s%d, %d" % (sT + 1, sT + 1, 32 * 1280))
    a("    s_add_u32 s%d, s%d, s%d" % (sT + 5, sT + 5, sT + 1))
    a("    s_mul_i32 s%d, s%d, 160" % (sT + 4, sT + 4))
    a("    s_add_u32 s%d, s%d, s%d" % (sT + 5, sT + 5, sT + 4))
    for j in range(8):
        if j % 3 == 0 and j: a("    s_add_u32 s%d, s%d, %d" % (sT + 5, sT + 5, 3 * 1280))
        for ct in range(5):
            a("    buffer_load_ushort v%d, v%d, %s, s%d offen offset:%d" % (vW + 8 * ct + j, vT + 3, S(sD, 4), sT + 5, (j % 3) * 1280 + 32 * ct))
    a("    s_mul_i32 s%d, s%d, 5120" % (sT + 1, sP))
    a("    s_add_u32 s%d, s%d, %d" % (sT + 1, sT + 1, WS_WO))
    a("    s_add_u32 s%d, s%d, 4096" % (sT + 2, sT + 1))
    a("    s_waitcnt vmcnt(0)")
    for ct in range(5):
        for p in range(4):
            a("    v_lshl_or_b32 v%d, v%d, 16, v%d" % (vAcc + 4 * ct + p, vW + 8 * ct + 2 * p + 1, vW + 8 * ct + 2 * p))
        a("    buffer_store_dwordx4 %s, v%d, %s, s%d offen offset:%d" % (V(vAcc + 4 * ct, 4), vT + 4, S(sWS, 4), sT + 1 if ct < 4 else sT + 2, 1024 * (ct & 3)))
    a("    s_add_u32 s%d, s%d, 1" % (sP, sP))
    a("    s_cmp_lt_u32 s%d, s%d" % (sP, sK0))
    a("    s_nop 1")
    a("    s_cbranch_scc1 LM_wo_loop")
    a("LM_exit:")
    a("    s_endpgm")
    return autonop(o)

def k2_code(**kw):
    c = ["    s_cmp_lt_u32 s2, %d" % NMOE, "    s_cbranch_scc1 LM_start",
         "    s_sub_u32 s2, s2, %d" % NMOE,
         "    s_cmp_ge_u32 s2, 256", "    s_cbranch_scc1 LM_exit"]
    c += A.attn_code(**kw)
    c += ["LM_start:"] + moe_code()
    return c
```

```python
from asmlib import *
from common import *
from gen_k2b import MOE_PART

RS = 336
WST = 64 * RS
K3_LDS = 4 * WST
ACC_OFF = 244
NV = ACC_OFF + 80

def k3_code():
    o = []; a = o.append
    sWS, sX, sOut = 4, 8, 12
    sRB, sCB, sWv = 16, 17, 18
    sT = 24
    vLane, vN16, vG = 1, 2, 3
    vT = 4
    vX = 16; vXN = 26; vG2 = 36; vL = 41; vR = 46; vH = 52
    vO = 56
    vW = 136
    a("    s_cmp_ge_u32 s2, 256")
    a("    s_cbranch_scc1 LK3_exit")
    a("    s_load_dwordx2 s[44:45], s[0:1], 0           ; x")
    a("    s_load_dwordx2 s[46:47], s[0:1], 64          ; out")
    a("    s_load_dwordx2 s[52:53], s[0:1], 80          ; ws")
    a("    s_lshr_b32 s%d, s2, 3" % sRB)
    a("    s_and_b32 s%d, s2, 7" % sCB)
    a("    v_and_b32 v%d, 63, v0" % vLane)
    a("    v_lshrrev_b32 v%d, 6, v0" % vT)
    a("    v_and_b32 v%d, 15, v0" % vN16)
    a("    v_bfe_u32 v%d, v0, 4, 2" % vG)
    a("    v_readfirstlane_b32 s%d, v%d" % (sWv, vT))
    a("    v_mul_u32_u24 v%d, 0x500, v%d" % (vT, vN16))
    a("    v_lshl_add_u32 v%d, v%d, 4, v%d" % (vT, vG, vT))
    a("    v_lshlrev_b32 v%d, 4, v%d" % (vT + 1, vLane))
    a("    s_mul_i32 s%d, s%d, %d" % (sT, sRB, 64 * ROWB))
    a("    s_mul_i32 s%d, s%d, 320" % (sT + 1, sWv))
    a("    s_add_u32 s%d, s%d, s%d" % (sT, sT, sT + 1))
    a("    s_add_u32 s%d, s%d, %d" % (32, sT, WS_O))
    for rt in range(1, 4): a("    s_add_u32 s%d, s%d, %d" % (32 + rt, 32, rt * 16 * ROWB))
    a("    s_lshl_b32 s%d, s%d, 2" % (sT, sCB))
    a("    s_add_u32 s%d, s%d, s%d" % (sT, sT, sWv))
    a("    s_mul_i32 s%d, s%d, %d" % (sT, sT, 25 * 1024))
    a("    s_add_u32 s%d, s%d, %d" % (sT, sT, WS_WO))
    a("    s_waitcnt lgkmcnt(0)")
    for srd, p, n in ((sX, 44, TOK * ROWB), (sOut, 46, TOK * ROWB), (sWS, 52, 0x1000000)):
        a("    s_mov_b32 s%d, s%d" % (srd, p)); a("    s_mov_b32 s%d, s%d" % (srd + 1, p + 1))
        a("    s_mov_b32 s%d, %d" % (srd + 2, n)); a("    s_mov_b32 s%d, 0x00020000" % (srd + 3))
    for s in range(5):
        a("    s_add_u32 s%d, s%d, %d" % (sT + 1, sT, s * 5 * 1024))
        a("    s_add_u32 s%d, s%d, %d" % (sT + 2, sT, s * 5 * 1024 + 4096))
        for rt in range(4):
            a("    buffer_load_dwordx4 %s, v%d, %s, s%d offen offset:%d" % (V(vO + 16 * s + 4 * rt, 4), vT, S(sWS, 4), 32 + rt, 64 * s))
        for ct in range(5):
            a("    buffer_load_dwordx4 %s, v%d, %s, s%d offen offset:%d" % (V(vW + 20 * s + 4 * ct, 4), vT + 1, S(sWS, 4), sT + 1 if ct < 4 else sT + 2, 1024 * (ct & 3)))
    for q in range(5):
        a("    v_add_u32 v%d, %d, v0" % (vT + 2, 256 * q))
        a("    v_mul_u32_u24 v%d, 3277, v%d" % (vT + 3, vT + 2))
        a("    v_lshrrev_b32 v%d, 16, v%d                 ; row = it/20" % (vR + q, vT + 3))
        a("    v_mul_u32_u24 v%d, 20, v%d" % (vT + 4, vR + q))
        a("    v_sub_u32 v%d, v%d, v%d                    ; c4" % (vT + 4, vT + 2, vT + 4))
        a("    v_mul_u32_u24 v%d, %d, v%d" % (vL + q, RS, vR + q))
        a("    v_lshl_add_u32 v%d, v%d, 4, v%d" % (vL + q, vT + 4, vL + q))
        a("    v_mul_u32_u24 v%d, 0x500, v%d" % (vG2 + q, vR + q))
        a("    v_lshl_add_u32 v%d, v%d, 3, v%d" % (vG2 + q, vT + 4, vG2 + q))
    a("    s_mul_i32 s%d, s%d, %d" % (sT + 1, sRB, 64 * ROWB))
    a("    s_mul_i32 s%d, s%d, 160" % (sT + 2, sCB))
    a("    s_add_u32 s%d, s%d, s%d                     ; tile byte offset" % (sT + 1, sT + 1, sT + 2))
    a("    s_add_u32 s%d, s%d, %d" % (sT + 2, sT + 1, WS_XN))
    for q in range(5):
        a("    buffer_load_dwordx2 %s, v%d, %s, s%d offen" % (V(vX + 2 * q, 2), vG2 + q, S(sX, 4), sT + 1))
        a("    buffer_load_dwordx2 %s, v%d, %s, s%d offen" % (V(vXN + 2 * q, 2), vG2 + q, S(sWS, 4), sT + 2))
    a("    v_mov_b32 v%d, %d" % (vT + 2, WS_MOE))
    a("    buffer_load_dwordx4 %s, v%d, %s, 0 offen" % (V(vH, 4), vT + 2, S(sWS, 4)))
    a("    v_mul_u32_u24 v%d, %d, v%d" % (vT, RS, vN16))
    a("    v_lshl_add_u32 v%d, v%d, 4, v%d" % (vT, vG, vT))
    a("    s_mul_i32 s%d, s%d, %d" % (sT, sWv, WST))
    a("    v_add_u32 v%d, s%d, v%d" % (vT, sT, vT))
    for s in range(5):
        a("    s_waitcnt vmcnt(%d)" % (11 + 9 * (4 - s)))
        for rt in range(4):
            for ct in range(5):
                k = 4 * (5 * rt + ct)
                acc = "a[%d:%d]" % (k, k + 3)
                a("    v_mfma_f32_16x16x32_bf16 %s, %s, %s, %s" % (acc, V(vW + 20 * s + 4 * ct, 4), V(vO + 16 * s + 4 * rt, 4), "0" if s == 0 else acc))
    a("    s_nop 7")
    for rt in range(4):
        for ct in range(5):
            k = 4 * (5 * rt + ct)
            a("    ds_write_b128 v%d, a[%d:%d] offset:%d" % (vT, k, k + 3, rt * 16 * RS + 64 * ct))
    a("    s_waitcnt lgkmcnt(0)")
    a("    s_barrier")
    vS = 56
    for q in range(5):
        for w in range(4):
            a("    ds_read_b128 %s, v%d offset:%d" % (V(vS + 16 * q + 4 * w, 4), vL + q, w * WST))
    a("    s_waitcnt vmcnt(0)")
    for i in range(4): a("    v_readfirstlane_b32 s%d, v%d" % (36 + i, vH + i))
    for q in range(5):
        b = vS + 16 * q
        a("    s_waitcnt lgkmcnt(%d)" % min(15, 4 * (4 - q)))
        for e in range(4):
            a("    v_add_f32 v%d, v%d, v%d" % (b + e, b + e, b + 4 + e))
            a("    v_add_f32 v%d, v%d, v%d" % (b + 8 + e, b + 8 + e, b + 12 + e))
            a("    v_add_f32 v%d, v%d, v%d" % (b + e, b + e, b + 8 + e))
            o.append(cvt(b + e, "0", b + e))
        for h in range(2):
            a("    v_lshlrev_b32 v%d, 16, v%d" % (b + 4 + 2 * h, vX + 2 * q + h))
            a("    v_and_b32 v%d, 0xffff0000, v%d" % (b + 5 + 2 * h, vX + 2 * q + h))
            a("    v_lshlrev_b32 v%d, 16, v%d" % (b + 8 + 2 * h, vXN + 2 * q + h))
            a("    v_and_b32 v%d, 0xffff0000, v%d" % (b + 9 + 2 * h, vXN + 2 * q + h))
        for e in range(4):
            a("    v_add_f32 v%d, v%d, v%d" % (b + e, b + e, b + 4 + e))
            o.append(cvt(b + e, "0", b + e))
    a("    s_lshr_b32 s%d, s36, 6" % (sT + 3))
    a("    s_lshr_b32 s%d, s37, 6" % (sT + 4))
    a("    s_cmp_eq_u32 s%d, s%d" % (sT + 3, sRB))
    a("    s_cbranch_scc1 LK3_moe")
    a("    s_cmp_eq_u32 s%d, s%d" % (sT + 4, sRB))
    a("    s_cbranch_scc1 LK3_moe")
    a("LK3_fin:")
    for q in range(5):
        b = vS + 16 * q
        for e in range(4):
            a("    v_add_f32 v%d, v%d, v%d" % (b + e, b + e, b + 8 + e))
        o.append(cvt(b + 4, b, b + 1)); o.append(cvt(b + 5, b + 2, b + 3))
        a("    buffer_store_dwordx2 %s, v%d, %s, s%d offen" % (V(b + 4, 2), vG2 + q, S(sOut, 4), sT + 1))
    a("LK3_exit:")
    a("    s_endpgm")
    code = autonop(o); o = []; a = o.append
    a("LK3_moe:")
    P = 136
    for tok in range(2):
        a("    s_lshr_b32 s%d, s%d, 6" % (sT + 3, 36 + tok))
        a("    s_cmp_lg_u32 s%d, s%d" % (sT + 3, sRB))
        a("    s_cbranch_scc1 LK3_nomoe%d" % tok)
        a("    s_and_b32 s%d, s%d, 63                     ; local row" % (sT + 3, 36 + tok))
        a("    s_mul_i32 s%d, s%d, 320" % (sT + 4, sCB))
        a("    s_add_u32 s%d, s%d, %d" % (sT + 4, sT + 4, MOE_PART + tok * 2560))
        a("    s_mul_i32 s%d, s%d, %d" % (sT + 5, sT + 3, 2 * ROWB))
        for q in range(5):
            b = vS + 16 * q
            a("    v_cmp_eq_u32 vcc, s%d, v%d" % (sT + 3, vR + q))
            a("    s_and_saveexec_b64 s[40:41], vcc")
            a("    s_cbranch_execz LK3_skip%d_%d" % (tok, q))
            a("    v_lshlrev_b32 v%d, 1, v%d" % (vT + 2, vG2 + q))
            a("    v_subrev_u32 v%d, s%d, v%d" % (vT + 2, sT + 5, vT + 2))
            a("    s_mov_b32 s42, s%d" % (sT + 4))
            for p in range(27):
                a("    buffer_load_dwordx4 %s, v%d, %s, s42 offen" % (V(P + 4 * p, 4), vT + 2, S(sWS, 4)))
                a("    s_add_u32 s42, s42, 5120")
            a("    s_waitcnt vmcnt(0)")
            for p in range(1, 27):
                for e in range(4):
                    a("    v_add_f32 v%d, v%d, v%d" % (P + e, P + e, P + 4 * p + e))
            for e in range(4):
                o.append(cvt(P + e, "0", P + e))
                a("    v_mul_f32 v%d, s%d, v%d" % (P + e, 38 + tok, P + e))
                o.append(cvt(P + e, "0", P + e))
                a("    v_add_f32 v%d, v%d, v%d" % (b + 8 + e, b + 8 + e, P + e))
                o.append(cvt(b + 8 + e, "0", b + 8 + e))
            a("LK3_skip%d_%d:" % (tok, q))
            a("    s_mov_b64 exec, s[40:41]")
        a("LK3_nomoe%d:" % tok)
    a("    s_branch LK3_fin")
    code += autonop(["    s_nop 4"] + o)
    return code
```

```python
import sys
from common import *
import gen_k1b, gen_k2b, gen_k3b, gen_attn2
HEAD = open("parallel_sum__softmax_full_mha__moe_arch_mod__prompt.s.ref").read().split("; Override launch")[0]
KD2 = KD.replace(".amdhsa_accum_offset {nv}", ".amdhsa_accum_offset {ao}")
def kern(name, code, nv, ns, ao=None):
    return ".globl %s\n.p2align 8\n.type %s,@function\n%s:\n" % (name, name, name) + "\n".join(code) + "\n" + KD2.format(name=name, nv=nv, ns=ns, ao=ao or nv)
def build(path, which=("k1","k2","k3"), **kw):
    launches = []; body = ""
    if "k1" in which:
        launches.append("; @launch kernel=k1_kernel grid=(256,1,1) block=(256,1,1) lds=%d" % gen_k1b.K1_LDS)
        body += kern("k1_kernel", gen_k1b.k1_code(), gen_k1b.NV, 64)
    if "k2" in which:
        launches.append("; @launch kernel=k2_kernel grid=(%d,1,1) block=(512,1,1) lds=%d" % (gen_k2b.GRID, gen_k2b.K2_LDS))
        body += kern("k2_kernel", gen_k2b.k2_code(**kw), gen_attn2.NVGPR, 64)
    if "k3" in which:
        launches.append("; @launch kernel=k3_kernel grid=(256,1,1) block=(256,1,1) lds=%d" % gen_k3b.K3_LDS)
        body += kern("k3_kernel", gen_k3b.k3_code(), gen_k3b.NV, 64, gen_k3b.ACC_OFF)
    txt = HEAD + "\n".join(launches) + "\n.amdgcn_target \"amdgcn-amd-amdhsa--gfx950\"\n.text\n" + body
    open(path, "w").write(txt)
if __name__ == "__main__":
    build(sys.argv[1], which=sys.argv[2].split(",") if len(sys.argv) > 2 else ("k1","k2","k3"))
```

```python
import struct, math
from asmlib import *
from common import *

BIAS = 80.0
vK0a, vK1a, vVa = 1, 2, 3
vQ0 = [4, 8]; vQ1 = [12, 14]
vP = 16
vT = 24
vS = [32, 48]
vO = [64, 80]
vKV = [96, 112]
NVGPR = 128
sKV, sQ, sO = 4, 8, 12
sOffK, sCnt = 16, 20
sVm = 18
sHf = 21
sT = 28
ATT_LDS = 163840
UNR = 4

def rdK(st, off):
    b = vKV[st]
    return ["    ds_read_b128 %s, v%d offset:%d" % (V(b, 4), vK0a, off),
            "    s_mov_b32 exec_hi, 0",
            "    ds_read_b64 %s, v%d offset:%d" % (V(b + 12, 2), vK1a, off),
            "    s_mov_b32 exec_hi, -1"]
def rdV(st, off):
    b = vKV[st]
    return ["    s_mov_b64 exec, %s" % S(sVm, 2),
            "    ds_read_b128 %s, v%d offset:%d" % (V(b + 4, 4), vVa, off),
            "    ds_read_b128 %s, v%d offset:%d" % (V(b + 8, 4), vVa, off + 640),
            "    s_mov_b64 exec, -1"]
def ldK(st, soff):
    b = vKV[st]
    return ["    buffer_load_dwordx4 %s, v%d, %s, s%d offen" % (V(b, 4), vK0a, S(sKV, 4), soff),
            "    s_mov_b32 exec_hi, 0",
            "    buffer_load_dwordx2 %s, v%d, %s, s%d offen" % (V(b + 12, 2), vK1a, S(sKV, 4), soff),
            "    s_mov_b32 exec_hi, -1"]
def ldV(st, soff):
    b = vKV[st]
    return ["    s_mov_b64 exec, %s" % S(sVm, 2),
            "    buffer_load_dwordx4 %s, v%d, %s, s%d offen" % (V(b + 4, 4), vVa, S(sKV, 4), soff),
            "    buffer_load_dwordx4 %s, v%d, %s, s%d offen offset:640" % (V(b + 8, 4), vVa, S(sKV, 4), soff),
            "    s_mov_b64 exec, -1"]
def QKa(x, st): return mfma32(vS[x], vKV[st], vQ0[x], "0")
def QKb(x, st): return mfma328(vS[x], vKV[st] + 12, vQ1[x], vS[x])
def PV(x, st, c): return mfma32(vO[x], vKV[st] + 4 + 4 * c, vP + 4 * c, vO[x])
def E(x, k): return ["    v_exp_f32 v%d, v%d" % (vS[x] + 4 * k + i, vS[x] + 4 * k + i) for i in range(4)]
def C(x, k): return [cvt(vP + 2 * k, vS[x] + 4 * k, vS[x] + 4 * k + 1), cvt(vP + 2 * k + 1, vS[x] + 4 * k + 2, vS[x] + 4 * k + 3)]

def tile_body(j):
    st = j & 1
    o = []
    o += C(1, 3) + [QKa(1, st)] + E(0, 0)
    o += C(0, 0) + [QKb(1, st)] + rdK(st, (j + 2) * KV_REC) + E(0, 1)
    o += C(0, 1) + [PV(1, st ^ 1, 1)] + rdV(st ^ 1, (j + 1) * KV_REC) + E(0, 2)
    o += C(0, 2) + ["    s_waitcnt lgkmcnt(4)", PV(0, st, 0)] + E(0, 3)
    o += C(0, 3) + [QKa(0, st ^ 1)] + E(1, 0)
    o += C(1, 0) + [QKb(0, st ^ 1)] + E(1, 1)
    o += C(1, 1) + [PV(0, st, 1)] + E(1, 2)
    o += C(1, 2) + [PV(1, st, 0)] + E(1, 3)
    return o

def addr_setup(a):
    a("    v_lshlrev_b32 v%d, 4, v%d" % (vK0a, vT))
    a("    v_lshlrev_b32 v%d, 3, v%d" % (vK1a, vT + 2))
    a("    v_add_u32 v%d, 1024, v%d" % (vK1a, vK1a))
    a("    v_mul_u32_u24 v%d, 20, v%d" % (vVa, vT + 3))
    a("    v_add_u32 v%d, v%d, v%d" % (vVa, vVa, vT + 2))
    a("    v_lshlrev_b32 v%d, 4, v%d" % (vVa, vVa))
    a("    v_add_u32 v%d, 1280, v%d" % (vVa, vVa))

def attn_code(force_fallback=False, lab="A", stamp2=False):
    import stamps
    ST = (lambda i: stamps.st(i) + ["    s_waitcnt lgkmcnt(0)"]) if stamp2 else (lambda i: [])
    FL = (lambda: ["    s_mov_b64 exec, -1", "    s_waitcnt vmcnt(0)"] + stamps.st(7) + stamps.flush(8, 22, 0x40000, ["    s_lshl_b32 s100, s24, 5", "    s_add_u32 s100, s100, s25", "    s_lshl_b32 s100, s100, 1", "    s_add_u32 s100, s100, s21"], 1)) if stamp2 else (lambda: [])
    o = ST(0); a = o.append
    a("    s_setprio 3")
    a("    s_load_dwordx2 s[22:23], s[0:1], 80          ; ws")
    a("    v_and_b32 v%d, 63, v0" % vT)
    a("    v_lshrrev_b32 v%d, 6, v0" % (vT + 1))
    a("    s_and_b32 s24, s2, 7")
    a("    s_lshr_b32 s25, s2, 3")
    a("    s_and_b32 s26, s25, 3")
    a("    s_lshl_b32 s24, s24, 2")
    a("    s_add_u32 s24, s24, s26                     ; head")
    a("    s_lshr_b32 s25, s25, 2")
    a("    v_readfirstlane_b32 s26, v%d" % (vT + 1))
    a("    s_lshl_b32 s25, s25, 2")
    a("    s_lshr_b32 s%d, s26, 2                      ; key half" % sHf)
    a("    s_and_b32 s26, s26, 3")
    a("    s_add_u32 s25, s25, s26")
    a("    s_mul_i32 s27, s24, %d" % KV_HEAD)
    a("    v_and_b32 v%d, 31, v%d" % (vT + 2, vT))
    a("    v_lshrrev_b32 v%d, 5, v%d" % (vT + 3, vT))
    addr_setup(a)
    a("    v_cmp_gt_u32 %s, 20, v%d" % (S(sVm, 2), vT + 2))
    a("    s_mul_i32 s%d, s%d, %d" % (sOffK, sHf, 32 * KV_REC))
    a("    s_lshl_b32 s17, s26, 10")
    a("    s_add_u32 s17, s17, s%d                     ; first DMA piece offset" % sOffK)
    a("    s_lshl_b32 s26, s25, 6")
    a("    v_add_u32 v%d, s26, v%d" % (vT + 4, vT + 2))
    a("    v_mul_u32_u24 v%d, 0x500, v%d" % (vT + 4, vT + 4))
    a("    s_mul_i32 s26, s24, 40")
    a("    v_add_u32 v%d, s26, v%d" % (vT + 4, vT + 4))
    a("    v_lshl_add_u32 v%d, v%d, 4, v%d" % (vT + 5, vT + 3, vT + 4))
    for x in range(2):
        a("    v_mov_b32 v%d, 0" % vQ1[x]); a("    v_mov_b32 v%d, 0" % (vQ1[x] + 1))
    a("    s_waitcnt lgkmcnt(0)")
    o += ST(1)
    a("    s_add_u32 s%d, s22, s27" % sKV)
    a("    s_addc_u32 s%d, s23, 0" % (sKV + 1))
    a("    s_mov_b32 s%d, %d" % (sKV + 2, KV_HEAD))
    a("    s_mov_b32 s%d, 0x00020000" % (sKV + 3))
    a("    s_add_u32 s%d, s22, %d" % (sQ, WS_Q))
    a("    s_addc_u32 s%d, s23, 0" % (sQ + 1))
    a("    s_mov_b32 s%d, %d" % (sQ + 2, TOK * ROWB))
    a("    s_mov_b32 s%d, 0x00020000" % (sQ + 3))
    a("    s_add_u32 s%d, s22, %d" % (sO, WS_O))
    a("    s_addc_u32 s%d, s23, 0" % (sO + 1))
    a("    s_mov_b32 s%d, %d" % (sO + 2, TOK * ROWB))
    a("    s_mov_b32 s%d, 0x00020000" % (sO + 3))
    def dma():
        return ["    s_mov_b32 m0, s17", "    s_nop 0",
                "    buffer_load_dwordx4 v%d, %s, s17 offen lds" % (vK0a, S(sKV, 4)),
                "    s_add_u32 s17, s17, 4096"]
    NA = 4
    o += dma()
    a("    s_mov_b32 s26, %d" % (32 * ROWB))
    a("    buffer_load_dwordx4 %s, v%d, %s, 0 offen" % (V(vQ0[0], 4), vT + 5, S(sQ, 4)))
    a("    buffer_load_dwordx4 %s, v%d, %s, s26 offen" % (V(vQ0[1], 4), vT + 5, S(sQ, 4)))
    a("    s_mov_b32 exec_hi, 0")
    a("    buffer_load_dwordx2 %s, v%d, %s, 0 offen offset:32" % (V(vQ1[0], 2), vT + 4, S(sQ, 4)))
    a("    buffer_load_dwordx2 %s, v%d, %s, s26 offen offset:32" % (V(vQ1[1], 2), vT + 4, S(sQ, 4)))
    a("    s_mov_b32 exec_hi, -1")
    for r in range(1, NA): o += dma()
    for st in range(2):
        a("    v_mov_b32 v%d, 0x3f80" % (vKV[st] + 12))
        a("    v_mov_b32 v%d, 0" % (vKV[st] + 13))
    a("    v_and_b32 v%d, 27, v%d" % (vT + 6, vT + 2))
    a("    v_cmp_eq_u32 vcc, 24, v%d" % (vT + 6))
    a("    v_mov_b32 v%d, 0x3f803f80" % (vT + 7))
    a("    v_cndmask_b32 v%d, 0, v%d, vcc" % (vT + 7, vT + 7))
    for st in range(2):
        for r in range(8): a("    v_mov_b32 v%d, v%d" % (vKV[st] + 4 + r, vT + 7))
    for x in range(2):
        for r in range(16): a("    v_mov_b32 v%d, 0" % (vO[x] + r))
    for r in range(8): a("    v_mov_b32 v%d, 0" % (vP + r))
    a("    s_waitcnt vmcnt(0)")
    a("    s_barrier                                   ; A: first %d KB of each half landed" % (4 * NA))
    o += ST(2)
    o += rdK(1, 0)
    a("    v_add_u32 v%d, s%d, v%d" % (vK1a, sOffK, vK1a))
    a("    v_add_u32 v%d, s%d, v%d" % (vVa, sOffK, vVa))
    a("    v_add_u32 v%d, s%d, v%d" % (vK0a, sOffK, vK0a))
    o += rdK(0, 0)
    a("    s_waitcnt lgkmcnt(2)")
    o += [QKa(0, 1), QKb(0, 1), QKa(1, 1), QKb(1, 1)]
    o += rdK(1, KV_REC)
    o += rdV(0, 0)
    a("    v_cmp_ne_u32 vcc, 0, v%d" % (vT + 3))
    for x in range(2):
        s = vS[x]; m = vT + 6 + x
        a("    v_max3_f32 v%d, v%d, v%d, v%d" % (m, s, s + 1, s + 2))
        for r in range(3, 15, 2):
            a("    v_max3_f32 v%d, v%d, v%d, v%d" % (m, m, s + r, s + r + 1))
        a("    v_max_f32 v%d, v%d, v%d" % (m, m, s + 15))
        a("    v_mov_b32 v%d, v%d" % (vT, m))
        a("    v_permlane32_swap_b32 v%d, v%d" % (m, vT))
        a("    v_max_f32 v%d, v%d, v%d" % (m, m, vT))
        a("    v_sub_f32 v%d, 0x%x, v%d" % (m, f32bits(-BIAS), m))
        o.append(cvt(m, m, "0"))
        a("    v_cndmask_b32 v%d, v%d, v%d, vcc" % (vQ1[x], vQ1[x], m))
    for r in range(4): a("    v_mov_b32 v%d, 0" % (vS[1] + 12 + r))
    a("    s_waitcnt lgkmcnt(4)")
    o += [QKa(0, 0), QKb(0, 0)]
    a("    s_mov_b32 s%d, %d" % (sCnt, 1 if force_fallback else 32 // UNR))
    a("    s_mov_b32 s17, 1")
    o += ST(3)
    a("    s_setprio 0")
    a("    s_nop 6")
    pro = autonop(o)
    body = sum((tile_body(j) for j in range(UNR)), [])
    tail = ["    v_add_u32 v%d, %d, v%d" % (r, UNR * KV_REC, r) for r in (vK0a, vK1a, vVa)]
    tail += ["    s_cmp_eq_u32 s17, 0", "    s_cbranch_scc1 L%s_nobar" % lab,
             "    s_mov_b32 s17, 0", "    s_waitcnt vmcnt(0)", "    s_barrier",
             "L%s_nobar:" % lab,
             "    s_sub_u32 s%d, s%d, 1" % (sCnt, sCnt), "    s_cmp_lg_u32 s%d, 0" % sCnt, "    s_cbranch_scc1 L%s_loop" % lab]
    bad = check(pro[-30:] + body + tail[:3] + body, "attn loop")
    assert not bad, "\n".join(bad)
    d = []; a = d.append
    d += C(1, 3) + [PV(1, 1, 1)] + ST(4)
    a("    s_waitcnt lgkmcnt(0)")
    a("    s_barrier")
    a("    s_and_b32 s26, s25, 3")
    a("    s_lshl_b32 s26, s26, 13")
    a("    s_lshl_b32 s27, s%d, 12" % sHf)
    a("    s_add_u32 s27, s27, s26")
    a("    s_xor_b32 s26, s27, 4096")
    a("    v_and_b32 v%d, 63, v0" % vT)
    a("    v_lshl_add_u32 v%d, v%d, 4, s27" % (vT + 6, vT))
    a("    v_lshl_add_u32 v%d, v%d, 4, s26" % (vT + 7, vT))
    a("    s_cmp_eq_u32 s%d, 0" % sHf)
    a("    s_cbranch_scc0 L%s_up" % lab)
    for q in range(4): a("    ds_write_b128 v%d, %s offset:%d" % (vT + 6, V(vO[1] + 4 * q, 4), 1024 * q))
    a("    s_branch L%s_xch" % lab)
    a("L%s_up:" % lab)
    for q in range(4): a("    ds_write_b128 v%d, %s offset:%d" % (vT + 6, V(vO[0] + 4 * q, 4), 1024 * q))
    a("    s_waitcnt lgkmcnt(0)")
    for r in range(13): a("    v_mov_b32 v%d, v%d" % (vO[0] + r, vO[1] + r))
    for r in range(4): a("    v_mov_b32 v%d, v%d" % (vQ0[0] + r, vQ0[1] + r))
    for r in range(2): a("    v_mov_b32 v%d, v%d" % (vQ1[0] + r, vQ1[1] + r))
    a("L%s_xch:" % lab)
    a("    s_waitcnt lgkmcnt(0)")
    a("    s_barrier")
    d += ST(5)
    for q in range(4): a("    ds_read_b128 %s, v%d offset:%d" % (V(vS[0] + 4 * q, 4), vT + 7, 1024 * q))
    a("    s_waitcnt lgkmcnt(0)")
    O = vO[0]
    for r in range(13): a("    v_add_f32 v%d, v%d, v%d" % (O + r, O + r, vS[0] + r))
    if force_fallback:
        a("    s_branch L%s_fallback" % lab)
    a("    v_add_f32 v%d, |v%d|, |v%d|" % (vT, O, O + 1))
    for r in range(2, 13): a("    v_add_f32 v%d, v%d, |v%d|" % (vT, vT, O + r))
    a("    v_mov_b32 v%d, 0x7f000000" % (vT + 1))
    a("    v_cmp_lt_f32 vcc, v%d, v%d" % (vT, vT + 1))
    a("    v_mov_b32 v%d, 0x03800000" % (vT + 1))
    a("    v_cmp_gt_f32 %s, v%d, v%d" % (S(sT, 2), O + 12, vT + 1))
    a("    s_nop 4")
    a("    s_and_b64 vcc, vcc, %s" % S(sT, 2))
    a("    s_cmp_eq_u64 vcc, exec")
    a("    s_cbranch_scc0 L%s_fallback" % lab)
    drain = autonop(body[-30:] + tail + d[:3] + ["    s_nop 15"] + d[3:])[30 + len(tail):]
    ep = []; a = ep.append
    a("L%s_epi:" % lab)
    a("    v_rcp_f32 v%d, v%d" % (vT, O + 12))
    for r in range(12): a("    v_mul_f32 v%d, v%d, v%d" % (O + r, O + r, vT))
    for r in range(6): ep.append(cvt(vP + r, O + 2 * r, O + 2 * r + 1))
    a("    s_lshl_b32 s26, s25, 6")
    a("    s_lshl_b32 s27, s%d, 5" % sHf)
    a("    s_add_u32 s26, s26, s27")
    a("    v_add_u32 v%d, s26, v%d" % (vT + 5, vT + 2))
    a("    v_lshrrev_b32 v%d, 4, v%d" % (vT + 6, vT + 5))
    a("    v_mul_u32_u24 v%d, %d, v%d" % (vT + 6, 20 * 1024, vT + 6))
    a("    v_and_b32 v%d, 15, v%d" % (vT + 5, vT + 5))
    a("    v_lshl_add_u32 v%d, v%d, 4, v%d" % (vT + 6, vT + 5, vT + 6))
    a("    s_mul_i32 s26, s24, 5")
    a("    v_add_u32 v%d, s26, v%d" % (vT + 5, vT + 3))
    for pc in range(3):
        if pc: a("    v_add_u32 v%d, 2, v%d" % (vT + 5, vT + 5))
        a("    v_lshrrev_b32 v%d, 1, v%d" % (vT + 7, vT + 5))
        a("    v_lshl_add_u32 v%d, v%d, 8, v%d" % (vT + 7, vT + 7, vT + 6))
        a("    v_and_b32 v%d, 1, v%d" % (vT + 1, vT + 5))
        a("    v_lshl_add_u32 v%d, v%d, 3, v%d" % (vT + 7, vT + 1, vT + 7))
        if pc == 2: a("    s_mov_b32 exec_hi, 0")
        a("    buffer_store_dwordx2 %s, v%d, %s, 0 offen" % (V(vP + 2 * pc, 2), vT + 7, S(sO, 4)))
    ep += ST(6) + FL()
    a("    s_endpgm")
    ep = autonop(ep)
    fb = []; a = fb.append
    M = vT + 6
    a("L%s_fallback:" % lab)
    a("    s_waitcnt vmcnt(0) lgkmcnt(0)")
    a("    v_and_b32 v%d, 63, v0" % vT)
    addr_setup(a)
    a("    v_cmp_eq_u32 vcc, 0, v%d" % (vT + 3))
    a("    v_mov_b32 v%d, 0xff800000" % M)
    a("    v_cndmask_b32 v%d, 0, v%d, vcc" % (vQ1[0], vQ1[0]))
    a("    s_mov_b32 s%d, 0" % sOffK)
    a("    s_mov_b32 s%d, 64" % sCnt)
    a("L%s_fb1:" % lab)
    fb += ldK(0, sOffK)
    a("    s_waitcnt vmcnt(0)")
    fb += [QKa(0, 0), QKb(0, 0)]
    for r in range(0, 16, 2):
        a("    v_max3_f32 v%d, v%d, v%d, v%d" % (M, M, vS[0] + r, vS[0] + r + 1))
    a("    s_add_u32 s%d, s%d, %d" % (sOffK, sOffK, KV_REC))
    a("    s_sub_u32 s%d, s%d, 1" % (sCnt, sCnt))
    a("    s_cmp_lg_u32 s%d, 0" % sCnt)
    a("    s_nop 7")
    a("    s_cbranch_scc1 L%s_fb1" % lab)
    a("    v_mov_b32 v%d, v%d" % (M + 1, M))
    a("    v_permlane32_swap_b32 v%d, v%d" % (M, M + 1))
    a("    v_max_f32 v%d, v%d, v%d" % (M, M, M + 1))
    for r in range(16): a("    v_mov_b32 v%d, 0" % (O + r))
    a("    s_mov_b32 s%d, 0" % sOffK)
    a("    s_mov_b32 s%d, 64" % sCnt)
    a("L%s_fb2:" % lab)
    fb += ldK(0, sOffK)
    fb += ldV(0, sOffK)
    a("    s_waitcnt vmcnt(0)")
    fb += [QKa(0, 0), QKb(0, 0)]
    for r in range(16):
        x = vS[0] + r
        a("    v_sub_f32 v%d, v%d, v%d" % (x, x, M))
        a("    v_exp_f32 v%d, v%d" % (x, x))
    for k in range(4): fb += C(0, k)
    fb += [PV(0, 0, 0), PV(0, 0, 1)]
    a("    s_add_u32 s%d, s%d, %d" % (sOffK, sOffK, KV_REC))
    a("    s_sub_u32 s%d, s%d, 1" % (sCnt, sCnt))
    a("    s_cmp_lg_u32 s%d, 0" % sCnt)
    a("    s_nop 15")
    a("    s_cbranch_scc1 L%s_fb2" % lab)
    a("    s_nop 15")
    a("    s_branch L%s_epi" % lab)
    fb = autonop(fb)
    return pro + ["    .p2align 6", "L%s_loop:" % lab] + body + tail + drain + ep + fb
```

```python
from asmlib import *
from common import *

LDS_ROW = 336
LDS_PLANE = 64 * LDS_ROW
L_RS = 0
L_X = 512
L_EX = L_X + 4 * LDS_PLANE
K1_LDS = L_EX + 65536
RING = 7

vLane, vN16, vG = 1, 2, 3
vWoff = 4
vXoff = 5
vLw = 6
vLr = 11
vAI = 12
vOne = 14
vNegM = 16
vSum = 20
vSq = 24
vT = 28
vWraw = 40
vAcc = 152
vFr = 216
vXf = 224
NV = 256
XB = [152, 172]
vD = 192

sX, sW, sWS = 4, 8, 12
sRB, sCB, sWv, sWi, sKh = 16, 17, 18, 19, 41
sJ = 20
sT = 24
sSelLo, sSelHi = 30, 31
sWr = 36
sCnt = 40

def wloads(slot):
    b = vWraw + 16 * slot
    o = []
    for j in range(8):
        o.append("    buffer_load_dwordx2 %s, v%d, %s, s%d offen%s" % (V(b + 2 * j, 2), vWoff, S(sW, 4), sJ + (j >> 1), " offset:3840" if j & 1 else ""))
    for q in range(4):
        o.append("    s_add_u32 s%d, s%d, %d" % (sJ + q, sJ + q, 8 * 3840))
    return o

def k1_code(stamp=False):
    import stamps
    ST = (lambda i: stamps.st(i)) if stamp else (lambda i: [])
    FL = (lambda: ["    s_waitcnt vmcnt(0)"] + stamps.st(7) + stamps.flush(8, 52, 0, ["    s_lshl_b32 s100, s2, 3", "    s_add_u32 s100, s100, s%d" % sWv], 1)) if stamp else (lambda: [])
    o = []; a = o.append
    a("    s_cmp_ge_u32 s2, 256")
    a("    s_cbranch_scc1 LK1_exit")
    o += ST(0)
    a("    s_load_dwordx4 s[44:47], s[0:1], 0           ; x, wqkv")
    a("    s_load_dwordx2 s[50:51], s[0:1], 32          ; w_r")
    a("    s_load_dwordx2 s[52:53], s[0:1], 80          ; ws")
    a("    s_bfe_u32 s%d, s2, 0x20001" % sRB)
    a("    s_lshl_b32 s%d, s%d, 3" % (sRB, sRB))
    a("    s_lshr_b32 s%d, s2, 5" % sT)
    a("    s_add_u32 s%d, s%d, s%d" % (sRB, sRB, sT))
    a("    s_and_b32 s%d, s2, 1" % sCB)
    a("    s_lshl_b32 s%d, s%d, 2" % (sCB, sCB))
    a("    s_bfe_u32 s%d, s2, 0x20003" % sT)
    a("    s_add_u32 s%d, s%d, s%d" % (sCB, sCB, sT))
    a("    v_and_b32 v%d, 63, v0" % vLane)
    a("    v_lshrrev_b32 v%d, 6, v0" % vT)
    a("    v_and_b32 v%d, 15, v0" % vN16)
    a("    v_bfe_u32 v%d, v0, 4, 2" % vG)
    a("    v_readfirstlane_b32 s%d, v%d" % (sWv, vT))
    a("    s_mov_b32 s%d, 0x05040100" % sSelLo)
    a("    s_mov_b32 s%d, 0x07060302" % sSelHi)
    a("    s_lshl_b32 s%d, s%d, 6" % (sT, sRB))
    a("    s_lshl_b32 s%d, s%d, 3                       ; local first row = 8*wave" % (sT + 1, sWv))
    a("    s_add_u32 s%d, s%d, s%d" % (sT, sT, sT + 1))
    a("    v_add_u32 v%d, s%d, v%d" % (vT, sT, vG))
    a("    v_mul_u32_u24 v%d, 0x500, v%d" % (vXoff, vT))
    a("    v_lshl_add_u32 v%d, v%d, 4, v%d" % (vXoff, vN16, vXoff))
    a("    s_lshr_b32 s%d, s%d, 2                       ; K half" % (sKh, sWv))
    a("    s_and_b32 s%d, s%d, 3" % (sT + 4, sWv))
    a("    s_lshl_b32 s%d, s%d, 2" % (sWi, sCB))
    a("    s_add_u32 s%d, s%d, s%d                      ; W index 0..31" % (sWi, sWi, sT + 4))
    a("    s_lshl_b32 s%d, s%d, 7" % (sT + 4, sWi))
    a("    s_mul_i32 s%d, s%d, %d" % (sT + 5, sKh, 80 * 3840))
    a("    s_add_u32 s%d, s%d, s%d" % (sT + 4, sT + 4, sT + 5))
    a("    s_mov_b32 s%d, %d" % (sT + 5, 160 * 3840))
    a("    v_mul_lo_u32 v%d, v%d, s%d" % (vWoff, vG, sT + 5))
    a("    v_lshl_add_u32 v%d, v%d, 3, v%d" % (vWoff, vN16, vWoff))
    a("    v_add_u32 v%d, s%d, v%d" % (vWoff, sT + 4, vWoff))
    for q in range(4): a("    s_mov_b32 s%d, %d" % (sJ + q, 2 * q * 3840))
    a("    s_waitcnt lgkmcnt(0)")
    o += ST(1)
    for srd, p, n in ((sX, 44, TOK * ROWB), (sW, 46, 640 * 3840), (sWr, 50, 1280), (sWS, 52, 0x1000000)):
        a("    s_mov_b32 s%d, s%d" % (srd, p)); a("    s_mov_b32 s%d, s%d" % (srd + 1, p + 1))
        a("    s_mov_b32 s%d, %d" % (srd + 2, n)); a("    s_mov_b32 s%d, 0x00020000" % (srd + 3))
    for rg in range(2):
        a("    s_mov_b32 s%d, %d" % (sT + 2, rg * 4 * ROWB))
        for j in range(5):
            a("    buffer_load_dwordx4 %s, v%d, %s, s%d offen offset:%d" % (V(XB[rg] + 4 * j, 4), vXoff, S(sX, 4), sT + 2, 256 * j))
    a("    s_cmp_ge_u32 s%d, 30" % sWi)
    a("    s_cselect_b32 s%d, 0, s%d" % (sW + 2, sW + 2))
    a("    s_barrier")
    NPRE = 4
    for st in range(NPRE): o += wloads(st)
    a("    v_add_u32 v%d, s%d, v%d                      ; local row (rg 0)" % (vT + 4, sT + 1, vG))
    a("    v_mul_u32_u24 v%d, %d, v%d" % (vT, LDS_ROW, vT + 4))
    a("    v_add_u32 v%d, %d, v%d" % (vT, L_X, vT))
    for j in range(5):
        a("    v_add_u32 v%d, %d, v%d" % (vT + 1, 16 * j, vN16))
        a("    v_mul_u32_u24 v%d, 205, v%d" % (vT + 2, vT + 1))
        a("    v_lshrrev_b32 v%d, 12, v%d" % (vT + 2, vT + 2))
        a("    v_mul_u32_u24 v%d, 20, v%d" % (vT + 3, vT + 2))
        a("    v_sub_u32 v%d, v%d, v%d" % (vT + 3, vT + 1, vT + 3))
        a("    v_mul_u32_u24 v%d, %d, v%d" % (vT + 2, LDS_PLANE, vT + 2))
        a("    v_lshl_add_u32 v%d, v%d, 4, v%d" % (vT + 3, vT + 3, vT + 2))
        a("    v_add_u32 v%d, v%d, v%d" % (vLw + j, vT + 3, vT))
    a("    v_lshlrev_b32 v%d, 2, v%d                    ; rs slot addr" % (vT + 11, vT + 4))
    a("    s_mul_i32 s%d, s%d, 160" % (sCnt, sKh))
    a("    s_add_u32 s%d, s%d, %d" % (sCnt, sCnt, L_X))
    a("    v_mul_u32_u24 v%d, %d, v%d" % (vLr, LDS_PLANE, vG))
    a("    v_mul_u32_u24 v%d, %d, v%d" % (vT, LDS_ROW, vN16))
    a("    v_add3_u32 v%d, v%d, v%d, s%d" % (vLr, vLr, vT, sCnt))
    a("    v_and_b32 v%d, 1, v%d" % (vT + 8, vLane))
    a("    v_cmp_eq_u32 s[58:59], 0, v%d" % (vT + 8))
    a("    v_lshlrev_b32 v%d, 4, v%d" % (vT + 8, vT + 8))
    a("    v_and_b32 v%d, 2, v%d" % (vT + 9, vLane))
    a("    v_cmp_eq_u32 s[54:55], 0, v%d" % (vT + 9))
    a("    v_mov_b32 v%d, 0x3f80" % (vT + 9))
    a("    v_lshlrev_b32 v%d, v%d, v%d" % (vT + 9, vT + 8, vT + 9))
    a("    v_cndmask_b32 v%d, 0, v%d, s[54:55]" % (vAI, vT + 9))
    a("    v_cndmask_b32 v%d, v%d, 0, s[54:55]" % (vAI + 1, vT + 9))
    a("    v_mov_b32 v%d, 0x3f803f80" % vOne)
    a("    v_mov_b32 v%d, 0x3f803f80" % (vOne + 1))
    a("    v_cmp_eq_u32 s[56:57], 0, v%d" % vN16)
    code = autonop(o)
    lncode = []
    for rg in range(2):
        o = []; a = o.append
        X = XB[rg]
        if rg == 0:
            a("    s_waitcnt vmcnt(%d)" % (8 * NPRE))
            o += ST(2)
        for i in range(10):
            o.append(mfma4(vSum, vOne, X + 2 * i, "0" if i == 0 else vSum))
            o.append(mfma4(vSq, X + 2 * i, X + 2 * i, "0" if i == 0 else vSq))
            a("    s_nop 0")
        a("    v_cndmask_b32 v%d, v%d, v%d, s[58:59]" % (vT + 2, vSq + 1, vSq))
        a("    v_cndmask_b32 v%d, v%d, v%d, s[58:59]" % (vT + 3, vSq + 3, vSq + 2))
        a("    v_cndmask_b32 v%d, v%d, v%d, s[54:55]" % (vT + 2, vT + 3, vT + 2))
        a("    v_mov_b32 v%d, v%d" % (vT, vSum))
        for sh in (8, 4, 2, 1):
            a("    v_add_f32_dpp v%d, v%d, v%d row_ror:%d row_mask:0xf bank_mask:0xf" % (vT, vT, vT, sh))
            a("    v_add_f32_dpp v%d, v%d, v%d row_ror:%d row_mask:0xf bank_mask:0xf" % (vT + 2, vT + 2, vT + 2, sh))
        a("    v_mul_f32 v%d, 0x%x, v%d" % (vT, f32bits(1.0 / 640), vT))
        o.append(cvt(vT + 1, "0", vT))
        for r in range(4): a("    v_sub_f32 v%d, 0, v%d" % (vNegM + r, vT + 1))
        a("    v_mul_f32 v%d, 0x%x, v%d" % (vT + 2, f32bits(1.0 / 640), vT + 2))
        a("    v_fma_f32 v%d, -v%d, v%d, v%d" % (vT + 2, vT, vT, vT + 2))
        stats = []; b = stats.append
        b("    v_max_f32 v%d, 0, v%d" % (vT + 2, vT + 2))
        stats.append(cvt(vT + 2, "0", vT + 2))
        b("    v_add_f32 v%d, 0x%x, v%d" % (vT + 2, f32bits(1e-5), vT + 2))
        stats.append(cvt(vT + 2, "0", vT + 2))
        b("    v_sqrt_f32 v%d, v%d" % (vT + 2, vT + 2))
        b("    s_nop 0")
        stats.append(cvt(vT + 2, "0", vT + 2))
        b("    v_rcp_f32 v%d, v%d" % (vT + 3, vT + 2))
        b("    s_nop 0")
        b("    v_fma_f32 v%d, -v%d, v%d, 1.0" % (vT + 4, vT + 2, vT + 3))
        b("    v_fma_f32 v%d, v%d, v%d, v%d" % (vT + 3, vT + 4, vT + 3, vT + 3))
        def D(i): return vD + 4 * (i & 3)
        seq = []
        for i in range(10 + 2):
            if i < 10: seq.append(mfma4(D(i), vAI, X + 2 * i, vNegM))
            if stats: seq.append(stats.pop(0))
            if i >= 2:
                seq += [cvt(X + 2 * (i - 2), D(i - 2), D(i - 2) + 1), cvt(X + 2 * (i - 2) + 1, D(i - 2) + 2, D(i - 2) + 3)]
                if (i - 2) & 1:
                    j = (i - 2) >> 1
                    seq.append("    ds_write_b128 v%d, %s offset:%d" % (vLw + j, V(X + 4 * j, 4), rg * 4 * LDS_ROW))
        o += seq + stats
        a("    s_mov_b64 exec, s[56:57]")
        a("    ds_write_b32 v%d, v%d offset:%d" % (vT + 11, vT + 3, L_RS + 16 * rg))
        a("    s_mov_b64 exec, -1")
        lncode += autonop(o)
    extra = sum((wloads(st) for st in range(NPRE, RING)), [])
    n = len(lncode); k = len(extra); j = 0; inexec = False
    for i, l in enumerate(lncode):
        if "s_mov_b64 exec, s[56:57]" in l: inexec = True
        if not inexec and i >= 2:
            while j < k and j * (n - 6) <= (i - 2) * k:
                code.append(extra[j]); j += 1
        code.append(l)
        if "s_mov_b64 exec, -1" in l: inexec = False
    code += extra[j:]
    o = []; a = o.append
    o += ST(3)
    a("    s_waitcnt lgkmcnt(0)")
    a("    s_barrier")
    o += ST(4)
    if stamp: a("    s_waitcnt lgkmcnt(0)")
    a("    s_cmp_ge_u32 s%d, 30" % sWi)
    a("    s_cbranch_scc1 LK1_xn")
    a("    s_cmp_ge_u32 s%d, 20" % sWi)
    a("    s_cbranch_scc1 LK1_gemmV")
    code += o
    def gemm(vtype):
        def xreads(par, off):
            b = vXf + 16 * par
            return ["    ds_read_b128 %s, v%d offset:%d" % (V(b + 4 * rt, 4), vLr, rt * 16 * LDS_ROW + off) for rt in range(4)]
        o = xreads(0, 0); a = o.append
        issued = RING
        for s in range(10):
            raw = vWraw + 16 * (s % RING)
            a("    s_waitcnt vmcnt(%d)" % (8 * (issued - s - 1)))
            if s + 1 < 10: o += xreads((s + 1) & 1, 16 * (s + 1))
            xb = vXf + 16 * (s & 1)
            for tp in range(2):
                for tt in range(2):
                    for p in range(4):
                        a("    v_perm_b32 v%d, v%d, v%d, s%d" % (vFr + 4 * tt + p, raw + 2 * (2 * p + 1) + tp, raw + 2 * (2 * p) + tp, sSelHi if tt else sSelLo))
                if tp == 0: a("    s_waitcnt lgkmcnt(%d)" % (4 if s + 1 < 10 else 0))
                if tp == 1 and issued < 10:
                    o += wloads(s % RING); issued += 1
                for tt in range(2):
                    t = 2 * tp + tt
                    for rt in range(4):
                        acc = vAcc + 16 * rt + 4 * t
                        c = "0" if s == 0 else acc
                        if vtype: o.append(m16(acc, xb + 4 * rt, vFr + 4 * tt, c))
                        else: o.append(m16(acc, vFr + 4 * tt, xb + 4 * rt, c))
        a("    s_lshl_b32 s%d, s%d, 13" % (sT + 4, sWv))
        a("    s_add_u32 s%d, s%d, %d" % (sT + 4, sT + 4, L_EX))
        a("    s_xor_b32 s%d, s%d, 4" % (sT + 5, sWv))
        a("    s_lshl_b32 s%d, s%d, 13" % (sT + 5, sT + 5))
        a("    s_add_u32 s%d, s%d, %d" % (sT + 5, sT + 5, L_EX))
        a("    v_lshl_add_u32 v%d, v%d, 4, s%d" % (vT, vLane, sT + 4))
        a("    v_lshl_add_u32 v%d, v%d, 4, s%d" % (vT + 1, vLane, sT + 5))
        a("    s_nop 7")
        lab = "V" if vtype else "Q"
        a("    s_cmp_eq_u32 s%d, 0" % sKh)
        a("    s_cbranch_scc0 LK1_up%s" % lab)
        for q in range(8): a("    ds_write_b128 v%d, %s offset:%d" % (vT, V(vAcc + 32 + 4 * q, 4), 1024 * q))
        a("    s_branch LK1_x%s" % lab)
        a("LK1_up%s:" % lab)
        for q in range(8): a("    ds_write_b128 v%d, %s offset:%d" % (vT, V(vAcc + 4 * q, 4), 1024 * q))
        a("    s_waitcnt lgkmcnt(0)")
        for r in range(32): a("    v_mov_b32 v%d, v%d" % (vAcc + r, vAcc + 32 + r))
        a("LK1_x%s:" % lab)
        a("    s_waitcnt lgkmcnt(0)")
        a("    s_barrier")
        for q in range(8): a("    ds_read_b128 %s, v%d offset:%d" % (V(vAcc + 32 + 4 * q, 4), vT + 1, 1024 * q))
        return o
    def addpart():
        return ["    v_add_f32 v%d, v%d, v%d" % (vAcc + r, vAcc + r, vAcc + 32 + r) for r in range(32)]
    vP = vWraw
    vAd = vWraw + 16
    o = gemm(False) + ST(5); a = o.append
    a("    s_lshl_b32 s%d, s%d, 7" % (sT + 4, sKh))
    a("    v_lshl_add_u32 v%d, v%d, 2, s%d" % (vT, vN16, sT + 4))
    for rr in range(2): a("    ds_read_b32 v%d, v%d offset:%d" % (vT + 4 + rr, vT, L_RS + 64 * rr))
    a("    s_lshl_b32 s%d, s%d, 6" % (sT, sRB))
    a("    s_lshl_b32 s%d, s%d, 5" % (sT + 4, sKh))
    a("    s_add_u32 s%d, s%d, s%d                      ; token base" % (sT, sT, sT + 4))
    a("    s_cmp_ge_u32 s%d, 10" % sWi)
    a("    s_cbranch_scc1 LK1_epiK")
    a("    v_add_u32 v%d, s%d, v%d" % (vT, sT, vN16))
    a("    v_mul_u32_u24 v%d, 0x500, v%d" % (vT, vT))
    a("    v_lshl_add_u32 v%d, v%d, 5, v%d" % (vT, vG, vT))
    a("    s_lshl_b32 s%d, s%d, 7" % (sT + 4, sWi))
    a("    s_add_u32 s%d, s%d, %d" % (sT + 4, sT + 4, WS_Q))
    a("    s_waitcnt lgkmcnt(0)")
    o += addpart()
    for rr in range(2): a("    v_mul_f32 v%d, 0x%x, v%d" % (vT + 4 + rr, f32bits(QSCALE), vT + 4 + rr))
    def scale_pack_qk(rr):
        r_ = []
        pk = vP + 8 * rr
        for q in range(16): r_.append("    v_mul_f32 v%d, v%d, v%d" % (vAcc + 16 * rr + q, vAcc + 16 * rr + q, vT + 4 + rr))
        for r in range(4):
            r_.append(cvt(pk + 2 * r, vAcc + 16 * rr + r, vAcc + 16 * rr + 4 + r))
            r_.append(cvt(pk + 2 * r + 1, vAcc + 16 * rr + 8 + r, vAcc + 16 * rr + 12 + r))
        return r_, pk
    for rr in range(2):
        r_, pk = scale_pack_qk(rr); o += r_
        a("    buffer_store_dwordx4 %s, v%d, %s, s%d offen" % (V(pk, 4), vT, S(sWS, 4), sT + 4))
        a("    buffer_store_dwordx4 %s, v%d, %s, s%d offen offset:16" % (V(pk + 4, 4), vT, S(sWS, 4), sT + 4))
        a("    s_add_u32 s%d, s%d, %d" % (sT + 4, sT + 4, 16 * ROWB))
    o += ST(6) + FL()
    a("    s_endpgm")
    a("LK1_epiK:")
    a("    s_sub_u32 s%d, s%d, 10" % (sT + 4, sWi))
    a("    s_lshl_b32 s%d, s%d, 4" % (sT + 4, sT + 4))
    a("    v_lshl_add_u32 v%d, v%d, 2, s%d" % (vT, vG, sT + 4))
    a("    s_mov_b32 s%d, %d" % (sT + 5, KV_HEAD))
    for r in range(4):
        a("    v_add_u32 v%d, %d, v%d" % (vT + 1, r, vT))
        a("    v_mul_u32_u24 v%d, 205, v%d" % (vT + 2, vT + 1))
        a("    v_lshrrev_b32 v%d, 10, v%d" % (vT + 2, vT + 2))
        a("    v_mul_u32_u24 v%d, 5, v%d" % (vT + 3, vT + 2))
        a("    v_sub_u32 v%d, v%d, v%d" % (vT + 3, vT + 1, vT + 3))
        a("    v_mul_lo_u32 v%d, v%d, s%d" % (vT + 2, vT + 2, sT + 5))
        a("    v_lshrrev_b32 v%d, 1, v%d" % (vT + 8, vT + 3))
        a("    v_lshlrev_b32 v%d, 9, v%d" % (vT + 8, vT + 8))
        a("    v_and_b32 v%d, 1, v%d" % (vT + 9, vT + 3))
        a("    v_lshl_add_u32 v%d, v%d, 3, v%d" % (vT + 8, vT + 9, vT + 8))
        a("    v_add_u32 v%d, v%d, v%d" % (vT + 2, vT + 2, vT + 8))
        a("    v_cmp_eq_u32 vcc, 4, v%d" % (vT + 3))
        a("    v_mov_b32 v%d, 16" % (vT + 9))
        a("    v_cndmask_b32 v%d, v%d, 8, vcc" % (vT + 9, vT + 9))
        a("    v_mul_u32_u24 v%d, v%d, v%d" % (vT + 8, vT + 9, vN16))
        a("    v_add_u32 v%d, v%d, v%d" % (vAd + 2 * r, vT + 2, vT + 8))
        a("    v_lshl_add_u32 v%d, v%d, 4, v%d" % (vAd + 2 * r + 1, vT + 9, vAd + 2 * r))
    a("    s_lshl_b32 s%d, s%d, 1" % (sT + 4, sRB))
    a("    s_add_u32 s%d, s%d, s%d                      ; key tile" % (sT + 4, sT + 4, sKh))
    a("    s_mul_i32 s%d, s%d, %d" % (sT + 4, sT + 4, KV_REC))
    a("    s_add_u32 s%d, s%d, %d" % (sT + 4, sT + 4, WS_KV))
    a("    s_waitcnt lgkmcnt(0)")
    o += addpart()
    for rr in range(2):
        r_, pk = scale_pack_qk(rr); o += r_
        for r in range(4):
            a("    buffer_store_dwordx2 %s, v%d, %s, s%d offen" % (V(pk + 2 * r, 2), vAd + 2 * r + rr, S(sWS, 4), sT + 4))
    o += ST(6) + FL()
    a("    s_endpgm")
    code += autonop(o)
    o = ["LK1_gemmV:"] + gemm(True) + ST(5); a = o.append
    a("    s_lshl_b32 s%d, s%d, 7" % (sT + 4, sKh))
    a("    v_lshl_add_u32 v%d, v%d, 4, s%d" % (vT, vG, sT + 4))
    for rr in range(2): a("    ds_read_b128 %s, v%d offset:%d" % (V(vAd + 4 * rr, 4), vT, L_RS + 64 * rr))
    a("    s_sub_u32 s%d, s%d, 20" % (sT + 4, sWi))
    a("    s_lshl_b32 s%d, s%d, 4" % (sT + 4, sT + 4))
    a("    v_add_u32 v%d, s%d, v%d" % (vT, sT + 4, vN16))
    a("    v_mul_u32_u24 v%d, 205, v%d" % (vT + 2, vT))
    a("    v_lshrrev_b32 v%d, 10, v%d" % (vT + 2, vT + 2))
    a("    v_mul_u32_u24 v%d, 5, v%d" % (vT + 3, vT + 2))
    a("    v_sub_u32 v%d, v%d, v%d" % (vT + 3, vT, vT + 3))
    a("    s_mov_b32 s%d, %d" % (sT + 5, KV_HEAD))
    a("    v_mul_lo_u32 v%d, v%d, s%d" % (vT + 2, vT + 2, sT + 5))
    a("    v_lshl_add_u32 v%d, v%d, 6, v%d" % (vT + 2, vT + 3, vT + 2))
    a("    v_and_b32 v%d, 1, v%d" % (vT + 4, vG))
    a("    v_mul_u32_u24 v%d, 320, v%d" % (vT + 4, vT + 4))
    a("    v_add_u32 v%d, v%d, v%d" % (vT + 2, vT + 2, vT + 4))
    a("    v_lshrrev_b32 v%d, 1, v%d" % (vT + 4, vG))
    a("    v_lshl_add_u32 v%d, v%d, 3, v%d" % (vT + 2, vT + 4, vT + 2))
    a("    s_lshl_b32 s%d, s%d, 1" % (sT + 4, sRB))
    a("    s_add_u32 s%d, s%d, s%d" % (sT + 4, sT + 4, sKh))
    a("    s_mul_i32 s%d, s%d, %d" % (sT + 4, sT + 4, KV_REC))
    a("    s_add_u32 s%d, s%d, %d" % (sT + 4, sT + 4, WS_KV + 1280))
    a("    s_waitcnt lgkmcnt(0)")
    o += addpart()
    for rr in range(2):
        pk = vP + 8 * rr
        for t in range(4):
            acc = vAcc + 16 * rr + 4 * t
            for r in range(4): a("    v_mul_f32 v%d, v%d, v%d" % (acc + r, acc + r, vAd + 4 * rr + r))
            o.append(cvt(pk + 2 * t, acc, acc + 1))
            o.append(cvt(pk + 2 * t + 1, acc + 2, acc + 3))
        for t in range(4):
            a("    buffer_store_dwordx2 %s, v%d, %s, s%d offen offset:%d" % (V(pk + 2 * t, 2), vT + 2, S(sWS, 4), sT + 4, rr * 640 + 16 * t))
    o += ST(6) + FL()
    a("    s_endpgm")
    code += autonop(o)
    o = ["LK1_xn:"]; a = o.append
    vWR = 60; X = 40; vA1, vA2, vA3 = 120, 122, 124; vDD = 100
    a("    s_waitcnt vmcnt(0)")
    a("    v_lshlrev_b32 v%d, 4, v%d" % (vT, vN16))
    for j in range(5):
        a("    buffer_load_dwordx4 %s, v%d, %s, 0 offen offset:%d" % (V(vWR + 4 * j, 4), vT, S(sWr, 4), 256 * j))
    a("    s_sub_u32 s%d, s%d, 30" % (sT + 4, sWi))
    a("    s_lshl_b32 s%d, s%d, 1" % (sT + 4, sT + 4))
    a("    s_add_u32 s%d, s%d, s%d" % (sT + 4, sT + 4, sKh))
    a("    s_lshl_b32 s%d, s%d, 4                      ; first local row" % (sT + 4, sT + 4))
    a("    s_sub_i32 s%d, s%d, s%d                     ; delta rows" % (sT + 4, sT + 4, sT + 1))
    a("    s_mul_i32 s%d, s%d, %d" % (sT + 5, sT + 4, LDS_ROW))
    for j in range(5): a("    v_add_u32 v%d, s%d, v%d" % (vLw + j, sT + 5, vLw + j))
    a("    s_mul_i32 s%d, s%d, %d" % (sT + 5, sT + 4, ROWB))
    a("    v_add_u32 v%d, s%d, v%d" % (vXoff, sT + 5, vXoff))
    a("    s_lshl_b32 s%d, s%d, 2" % (sT + 5, sT + 4))
    a("    v_add_u32 v%d, s%d, v%d" % (vT + 11, sT + 5, vT + 11))
    a("    s_lshl_b32 s%d, s%d, 8" % (sT + 5, sRB))
    a("    s_add_u32 s%d, s%d, %d" % (sT + 5, sT + 5, WS_R))
    a("    s_mov_b32 s%d, %d" % (sT + 4, WS_XN))
    a("    s_mov_b32 s%d, 4" % sCnt)
    a("    v_mov_b32 v126, 0")
    a("    v_mov_b32 v127, 0")
    a("    s_lshl_b32 s42, s%d, 6" % sRB)
    a("    s_sub_u32 s42, 2047, s42")
    a("LK1_xn_loop:")
    a("    ds_read_b32 v%d, v%d offset:%d" % (vT + 3, vT + 11, L_RS))
    for j in range(5): a("    ds_read_b128 %s, v%d" % (V(X + 4 * j, 4), vLw + j))
    a("    s_waitcnt lgkmcnt(5)")
    o.append(cvt(vT + 4, "0", vT + 3))
    a("    v_sub_f32 v%d, v%d, v%d" % (vT + 3, vT + 3, vT + 4))
    o.append(cvt(vT + 5, "0", vT + 3))
    a("    v_sub_f32 v%d, v%d, v%d" % (vT + 3, vT + 3, vT + 5))
    o.append(cvt(vT + 6, "0", vT + 3))
    for reg, src in ((vA1, vT + 4), (vA2, vT + 5), (vA3, vT + 6)):
        a("    v_lshrrev_b32 v%d, 16, v%d" % (src, src))
        a("    v_lshlrev_b32 v%d, v%d, v%d" % (src, vT + 8, src))
        a("    v_cndmask_b32 v%d, 0, v%d, s[54:55]" % (reg, src))
        a("    v_cndmask_b32 v%d, v%d, 0, s[54:55]" % (reg + 1, src))
    a("    s_waitcnt lgkmcnt(0)")
    def D(i): return vDD + 4 * (i & 3)
    for i in range(10 + 2):
        s3 = [mfma4(D(i), vA1, X + 2 * i, "0"), mfma4(D(i), vA2, X + 2 * i, D(i)), mfma4(D(i), vA3, X + 2 * i, D(i))] if i < 10 else []
        s4 = [cvt(X + 2 * (i - 2), D(i - 2), D(i - 2) + 1), cvt(X + 2 * (i - 2) + 1, D(i - 2) + 2, D(i - 2) + 3)] if i >= 2 else []
        for q in range(3):
            if q < len(s3): o.append(s3[q])
            if q < len(s4): o.append(s4[q])
    for j in range(5):
        a("    buffer_store_dwordx4 %s, v%d, %s, s%d offen offset:%d" % (V(X + 4 * j, 4), vXoff, S(sWS, 4), sT + 4, 256 * j))
    a("    v_mov_b32 v%d, 0" % vT); a("    v_mov_b32 v%d, 0" % (vT + 1))
    a("    s_waitcnt vmcnt(5)")
    for i in range(20):
        a("    v_dot2c_f32_bf16 v%d, v%d, v%d" % (vT + (i & 1), X + i, vWR + i))
    a("    s_nop 2")
    a("    v_add_f32 v%d, v%d, v%d" % (vT, vT, vT + 1))
    for sh in (8, 4, 2, 1):
        a("    v_add_f32_dpp v%d, v%d, v%d row_ror:%d row_mask:0xf bank_mask:0xf" % (vT, vT, vT, sh))
    o.append(cvt(vT, "0", vT))
    a("    s_mov_b64 exec, s[56:57]")
    a("    buffer_store_dword v%d, v%d, %s, s%d offen" % (vT, vT + 11, S(sWS, 4), sT + 5))
    a("    s_mov_b64 exec, -1")
    a("    v_ashrrev_i32 v%d, 31, v%d" % (vT + 1, vT))
    a("    v_or_b32 v%d, 0x80000000, v%d" % (vT + 1, vT + 1))
    a("    v_xor_b32 v%d, v%d, v%d" % (vT + 1, vT, vT + 1))
    a("    v_and_b32 v%d, 0xffff0000, v%d" % (vT + 1, vT + 1))
    a("    v_lshrrev_b32 v%d, 2, v%d" % (vT + 2, vT + 11))
    a("    v_sub_u32 v%d, s42, v%d" % (vT + 2, vT + 2))
    a("    v_or_b32 v%d, v%d, v%d" % (vT + 1, vT + 1, vT + 2))
    a("    v_med3_u32 v127, v126, v127, v%d" % (vT + 1))
    a("    v_max_u32 v126, v126, v%d" % (vT + 1))
    for j in range(5): a("    v_add_u32 v%d, %d, v%d" % (vLw + j, 4 * LDS_ROW, vLw + j))
    a("    v_add_u32 v%d, %d, v%d" % (vXoff, 4 * ROWB, vXoff))
    a("    v_add_u32 v%d, 16, v%d" % (vT + 11, vT + 11))
    a("    s_sub_u32 s%d, s%d, 1" % (sCnt, sCnt))
    a("    s_cmp_lg_u32 s%d, 0" % sCnt)
    a("    s_nop 3")
    a("    s_cbranch_scc1 LK1_xn_loop")
    for q in range(4):
        a("    v_readlane_b32 s%d, v126, %d" % (60 - 16 + 2 * q + 16, 16 * q) if False else "    v_readlane_b32 s%d, v126, %d" % (20 + 2 * q if q < 2 else 24 + 2 * (q - 2), 16 * q))
        a("    v_readlane_b32 s%d, v127, %d" % (21 + 2 * q if q < 2 else 25 + 2 * (q - 2), 16 * q))
    a("    s_nop 3")
    def merge(a1, a2, b1, b2):
        a("    s_min_u32 s42, s%d, s%d" % (a1, b1))
        a("    s_max_u32 s%d, s%d, s%d" % (a1, a1, b1))
        a("    s_max_u32 s%d, s%d, s%d" % (a2, a2, b2))
        a("    s_max_u32 s%d, s%d, s42" % (a2, a2))
    merge(20, 21, 22, 23); merge(24, 25, 26, 27); merge(20, 21, 24, 25)
    a("    s_sub_u32 s24, s%d, 30" % sWi)
    a("    s_lshl_b32 s24, s24, 1")
    a("    s_add_u32 s24, s24, s%d" % sKh)
    a("    s_lshl_b32 s25, s%d, 2" % sRB)
    a("    s_add_u32 s24, s24, s25")
    a("    s_lshl_b32 s24, s24, 3")
    a("    s_add_u32 s24, s24, %d" % WS_KEY)
    a("    v_mov_b32 v126, s20")
    a("    v_mov_b32 v127, s21")
    a("    v_mov_b32 v125, s24")
    a("    s_mov_b64 exec, 1")
    a("    buffer_store_dwordx2 v[126:127], v125, %s, 0 offen" % S(sWS, 4))
    a("    s_mov_b64 exec, -1")
    o += ST(5) + ST(6) + FL()
    a("LK1_exit:")
    a("    s_endpgm")
    code += autonop(o)
    return code
```

```python
from asmlib import *
from common import *
import gen_attn3 as A

GRID = 256
MOE_GU = WS_MOE + 4096
MOE_PART = WS_MOE + 0x20000
MOE_Y2 = WS_MOE + 0x50000
K2_LDS = A.ATT_LDS
SPIN_MAX = 2000

def perms(dst, raw, tpair, sLo, sHi):
    o = []
    for tt in range(2):
        for p in range(4):
            o.append("    v_perm_b32 v%d, v%d, v%d, s%d" % (dst + 4 * tt + p, raw + 2 * (2 * p + 1) + tpair, raw + 2 * (2 * p) + tpair, sHi if tt else sLo))
    return o

def helper_code(level=3):
    o = []; a = o.append
    sWS, sG, sU, sD, sDbg, sWo = 4, 8, 12, 16, 56, 60
    sK0, sK1, sI0, sI1 = 20, 21, 22, 23
    sT = 24
    sGp, sGe, sNoSig, sDp = 32, 33, 34, 35
    sSel = 36
    sP, sC = 40, 41
    sMask = 42
    sLo, sHi = 68, 69
    vL, vN16, vG = 1, 2, 3
    vT = 4
    vGo = 16; vDo = 17; vXo = 18; vBp = 19
    vAcc = 20
    vB = 36
    vFr = 56
    vW = 64
    a("LH_start:")
    a("    s_setprio 2")
    a("    s_load_dwordx4 s[44:47], s[0:1], 40")
    a("    s_load_dwordx2 s[48:49], s[0:1], 56          ; down")
    a("    s_load_dwordx2 s[50:51], s[0:1], 16          ; wo")
    a("    s_load_dwordx4 s[52:55], s[0:1], 72")
    a("    v_and_b32 v%d, 63, v0" % vL)
    a("    v_and_b32 v%d, 15, v0" % vN16)
    a("    v_bfe_u32 v%d, v0, 4, 2" % vG)
    a("    s_mov_b32 s%d, 0x05040100" % sLo)
    a("    s_mov_b32 s%d, 0x07060302" % sHi)
    a("    v_mul_u32_u24 v%d, %d, v%d" % (vGo, 8 * 3456, vG))
    a("    v_lshl_add_u32 v%d, v%d, 3, v%d" % (vGo, vN16, vGo))
    a("    v_and_b32 v%d, 1, v%d" % (vT, vG))
    a("    v_lshrrev_b32 v%d, 1, v%d" % (vT + 1, vG))
    a("    v_lshl_add_u32 v%d, v%d, 5, v%d             ; 32(g&1) + (g>>1)" % (vT, vT, vT + 1))
    a("    v_mul_u32_u24 v%d, 1280, v%d" % (vDo, vT))
    a("    v_lshl_add_u32 v%d, v%d, 3, v%d" % (vDo, vN16, vDo))
    a("    v_and_b32 v%d, 1, v%d" % (vT, vN16))
    a("    v_lshlrev_b32 v%d, 5, v%d" % (vT, vT))
    a("    v_lshl_add_u32 v%d, v%d, 2, v%d             ; src lane = 32 tok + 4 g (+16 s + q)" % (vT, vG, vT))
    a("    v_lshlrev_b32 v%d, 2, v%d" % (vBp, vT))
    a("    v_lshlrev_b32 v%d, 4, v%d" % (vT + 2, vL))
    a("    v_cmp_gt_u32 %s, 2, v%d" % (S(sMask, 2), vN16))
    a("    v_mul_u32_u24 v%d, %d, v%d" % (vT + 3, 8 * 1280, vG))
    a("    v_lshl_add_u32 v%d, v%d, 1, v%d" % (vT + 3, vN16, vT + 3))
    a("    s_waitcnt lgkmcnt(0)")
    for srd, p, n in ((sG, 44, 640 * 3456), (sU, 46, 640 * 3456), (sD, 48, 1728 * 1280), (sWo, 50, 640 * 1280), (sDbg, 52, 256), (sWS, 54, 0x1000000)):
        a("    s_mov_b32 s%d, s%d" % (srd, p)); a("    s_mov_b32 s%d, s%d" % (srd + 1, p + 1))
        a("    s_mov_b32 s%d, %d" % (srd + 2, n)); a("    s_mov_b32 s%d, 0x00020000" % (srd + 3))
    a("    s_and_b32 s24, s2, 7")
    a("    s_bfe_u32 s25, s2, 0x20003")
    a("    s_lshl_b32 s24, s24, 2")
    a("    s_add_u32 s24, s24, s25")
    a("    s_mul_i32 s24, s24, %d" % KV_HEAD)
    a("    s_add_u32 s%d, s54, s24" % sSel)
    a("    s_addc_u32 s%d, s55, 0" % (sSel + 1))
    a("    s_mov_b32 s%d, %d" % (sSel + 2, KV_HEAD))
    a("    s_mov_b32 s%d, 0x00020000" % (sSel + 3))
    a("    s_mov_b32 s24, 16384")
    a("    s_barrier                                   ; A")
    a("LH_dma:")
    for hf in range(2):
        a("    s_add_u32 s25, s24, %d" % (hf * 32 * KV_REC))
        a("    s_mov_b32 m0, s25")
        a("    s_nop 0")
        for q in range(4):
            a("    buffer_load_dwordx4 v%d, %s, s25 offen offset:%d lds" % (vT + 2, S(sSel, 4), 1024 * q))
    a("    s_add_u32 s24, s24, 4096")
    a("    s_cmp_lt_u32 s24, %d" % (32 * KV_REC))
    a("    s_cbranch_scc1 LH_dma")
    a("    s_waitcnt vmcnt(0)")
    a("    s_barrier                                   ; B")
    a("    s_mov_b32 s%d, %d" % (sT, WS_KEY))
    a("    buffer_load_dwordx4 %s, v%d, %s, s%d offen" % (V(vFr, 4), vT + 2, S(sWS, 4), sT))
    for i in range(4):
        a("    s_add_u32 s24, s2, %d" % (256 * i))
        a("    s_min_u32 s24, s24, 799")
        a("    s_mul_i32 s25, s24, 52429")
        a("    s_lshr_b32 s25, s25, 18")
        a("    s_mul_i32 s26, s25, 5")
        a("    s_sub_u32 s26, s24, s26")
        a("    s_mul_i32 s28, s25, 52429")
        a("    s_lshr_b32 s28, s28, 18")
        a("    s_mul_i32 s29, s28, 5")
        a("    s_sub_u32 s25, s25, s29")
        a("    s_and_b32 s29, s28, 3")
        a("    s_lshr_b32 s28, s28, 2")
        a("    s_mul_i32 s29, s29, %d" % (160 * 1280))
        a("    s_mul_i32 s25, s25, %d" % (32 * 1280))
        a("    s_add_u32 s29, s29, s25")
        a("    s_mul_i32 s28, s28, 160")
        a("    s_add_u32 s29, s29, s28")
        a("    s_lshl_b32 s26, s26, 5")
        a("    s_add_u32 s29, s29, s26")
        a("    s_add_u32 s28, s29, %d" % (4 * 1280))
        for j in range(8):
            a("    buffer_load_ushort v%d, v%d, %s, s%d offen offset:%d" % (vW + 8 * i + j, vT + 3, S(sWo, 4), 29 if j < 4 else 28, (j & 3) * 1280))
        a("    s_lshl_b32 s%d, s24, 10" % (64 + i))
        a("    s_add_u32 s%d, s%d, %d" % (64 + i, 64 + i, WS_WO))
    a("    s_waitcnt vmcnt(32)")
    a("    v_max_u32 v%d, v%d, v%d" % (vT, vFr, vFr + 2))
    a("    v_min_u32 v%d, v%d, v%d" % (vT + 1, vFr, vFr + 2))
    a("    v_max3_u32 v%d, v%d, v%d, v%d" % (vT + 1, vT + 1, vFr + 1, vFr + 3))
    for rnd in range(2):
        a("    v_mov_b32 v%d, v%d" % (vT + 4, vT))
        for sh in (8, 4, 2, 1):
            a("    v_max_u32_dpp v%d, v%d, v%d row_ror:%d row_mask:0xf bank_mask:0xf" % (vT + 4, vT + 4, vT + 4, sh))
        for q in range(4):
            a("    v_readlane_b32 s%d, v%d, %d" % (sT + q, vT + 4, 16 * q))
        a("    s_nop 1")
        a("    s_max_u32 s%d, s%d, s%d" % (sT, sT, sT + 1))
        a("    s_max_u32 s%d, s%d, s%d" % (sT + 2, sT + 2, sT + 3))
        a("    s_max_u32 s%d, s%d, s%d" % (sK0 + rnd, sT, sT + 2))
        if rnd == 0:
            a("    v_cmp_eq_u32 vcc, s%d, v%d" % (sK0, vT))
            a("    v_cndmask_b32 v%d, v%d, v%d, vcc" % (vT, vT, vT + 1))
    for rnd in range(2):
        a("    s_and_b32 s%d, s%d, 0x7ff" % (sI0 + rnd, sK0 + rnd))
        a("    s_sub_u32 s%d, 2047, s%d" % (sI0 + rnd, sI0 + rnd))
    a("    v_and_b32 v%d, 1, v%d" % (vT, vN16))
    a("    v_cmp_eq_u32 vcc, 1, v%d" % vT)
    a("    v_mov_b32 v%d, s%d" % (vT, sI0))
    a("    v_mov_b32 v%d, s%d" % (vT + 1, sI1))
    a("    v_cndmask_b32 v%d, v%d, v%d, vcc" % (vT, vT, vT + 1))
    a("    v_mul_u32_u24 v%d, 0x500, v%d" % (vXo, vT))
    a("    v_lshl_add_u32 v%d, v%d, 4, v%d" % (vXo, vG, vXo))
    for i in range(4):
        a("    s_waitcnt vmcnt(%d)" % (8 * (3 - i) + i))
        for p in range(4):
            a("    v_lshl_or_b32 v%d, v%d, 16, v%d" % (vAcc + 4 * i + p, vW + 8 * i + 2 * p + 1, vW + 8 * i + 2 * p))
        a("    buffer_store_dwordx4 %s, v%d, %s, s%d offen" % (V(vAcc + 4 * i, 4), vT + 2, S(sWS, 4), 64 + i))
    a("    s_cmp_lg_u32 s2, 0")
    a("    s_cbranch_scc1 LH_nohdr")
    a("    v_mov_b32 v%d, s%d" % (vT + 4, sI0))
    a("    v_mov_b32 v%d, s%d" % (vT + 5, sI1))
    a("    v_mov_b32 v%d, %d" % (vT + 6, WS_MOE))
    a("    s_mov_b64 exec, 1")
    a("    buffer_store_dwordx2 %s, v%d, %s, 0 offen" % (V(vT + 4, 2), vT + 6, S(sWS, 4)))
    a("    s_mov_b64 exec, -1")
    a("LH_nohdr:")
    if level == 1: a("    s_branch LH_exit")
    a("    s_mov_b32 s%d, s2" % sGp)
    a("    s_add_u32 s%d, s2, 1" % sGe)
    a("    s_min_u32 s%d, s%d, 216" % (sGe, sGe))
    a("    s_mov_b32 s%d, 0" % sNoSig)
    a("    s_mov_b32 s%d, s2" % sDp)
    a("LH_gloop:")
    a("    s_cmp_ge_u32 s%d, s%d" % (sGp, sGe))
    a("    s_cbranch_scc1 LH_gdone")
    a("    s_bitcmp1_b32 s%d, 2" % sGp)
    for i in range(2): a("    s_cselect_b32 s%d, s%d, s%d" % (sSel + i, sU + i, sG + i))
    a("    s_mov_b32 s%d, %d" % (sSel + 2, 640 * 3456)); a("    s_mov_b32 s%d, 0x00020000" % (sSel + 3))
    a("    s_and_b32 s%d, s%d, 3" % (sT, sGp))
    a("    s_lshr_b32 s%d, s%d, 3" % (sT + 1, sGp))
    a("    s_mul_i32 s%d, s%d, %d" % (sT + 2, sT, 160 * 3456))
    a("    s_lshl_b32 s%d, s%d, 7" % (sT + 3, sT + 1))
    a("    s_add_u32 s%d, s%d, s%d" % (sT + 2, sT + 2, sT + 3))
    a("    s_mul_i32 s%d, s%d, 320" % (sT + 3, sT))
    a("    s_add_u32 s%d, s%d, %d" % (sT + 3, sT + 3, WS_XN))
    a("    s_waitcnt vmcnt(0)")
    def gl(s):
        r = []
        for j in range(8):
            r.append("    buffer_load_dwordx2 %s, v%d, %s, s%d offen%s" % (V(vW + 16 * (s % 4) + 2 * j, 2), vGo, S(sSel, 4), sT + 2, " offset:3456" if j & 1 else ""))
            if j & 1: r.append("    s_add_u32 s%d, s%d, %d" % (sT + 2, sT + 2, 2 * 3456 if j < 7 else 26 * 3456))
        return r
    for s in range(5):
        a("    buffer_load_dwordx4 %s, v%d, %s, s%d offen offset:%d" % (V(vB + 4 * s, 4), vXo, S(sWS, 4), sT + 3, 64 * s))
    for s in range(4): o += gl(s)
    for s in range(5):
        a("    s_waitcnt vmcnt(%d)" % {0: 24, 1: 24, 2: 16, 3: 8, 4: 0}[s])
        for tp in range(2):
            o += perms(vFr, vW + 16 * (s % 4), tp, sLo, sHi)
            if s == 0 and tp == 1: o += gl(4)
            for tt in range(2):
                acc = vAcc + 4 * (2 * tp + tt)
                o.append(m16(acc, vFr + 4 * tt, vB + 4 * s, "0" if s == 0 else acc))
    a("    v_lshlrev_b32 v%d, 8, v%d" % (vT, vN16))
    a("    v_lshl_add_u32 v%d, v%d, 4, v%d" % (vT, vG, vT))
    a("    s_lshl_b32 s%d, s%d, 9" % (sT + 2, sGp))
    a("    s_add_u32 s%d, s%d, %d" % (sT + 2, sT + 2, MOE_GU))
    a("    s_nop 7")
    a("    s_mov_b64 exec, %s" % S(sMask, 2))
    for t in range(4):
        a("    buffer_store_dwordx4 %s, v%d, %s, s%d offen offset:%d sc1" % (V(vAcc + 4 * t, 4), vT, S(sWS, 4), sT + 2, 64 * t))
    a("    s_mov_b64 exec, -1")
    a("    s_waitcnt vmcnt(0)")
    a("    s_cmp_lg_u32 s%d, 0" % sNoSig)
    a("    s_cbranch_scc1 LH_nosig")
    a("    s_lshl_b32 s%d, s%d, 2" % (sT + 2, sT + 1))
    a("    v_mov_b32 v%d, s%d" % (vT, sT + 2))
    a("    v_mov_b32 v%d, 1" % (vT + 1))
    a("    s_mov_b64 exec, 1")
    a("    buffer_atomic_add v%d, v%d, %s, 0 offen" % (vT + 1, vT, S(sDbg, 4)))
    a("    s_mov_b64 exec, -1")
    a("LH_nosig:")
    a("    s_add_u32 s%d, s%d, 1" % (sGp, sGp))
    a("    s_branch LH_gloop")
    a("LH_gdone:")
    if level == 2: a("    s_branch LH_exit")
    a("    s_mul_i32 s%d, s%d, 6554" % (sP, sDp))
    a("    s_lshr_b32 s%d, s%d, 16" % (sP, sP))
    a("    s_mul_i32 s%d, s%d, 10" % (sC, sP))
    a("    s_sub_u32 s%d, s%d, s%d" % (sC, sDp, sC))
    a("    s_mul_i32 s%d, s%d, %d" % (sT + 2, sP, 64 * 1280))
    a("    s_lshl_b32 s%d, s%d, 7" % (sT + 3, sC))
    a("    s_add_u32 s%d, s%d, s%d" % (sT + 2, sT + 2, sT + 3))
    a("    s_waitcnt vmcnt(0)")
    for s in range(2):
        for j in range(8):
            row = 16 * (j >> 2) + 4 * (j & 3) + 2 * s
            a("    s_add_u32 s%d, s%d, %d" % (sT + 3, sT + 2, row * 1280))
            a("    buffer_load_dwordx2 %s, v%d, %s, s%d offen" % (V(vW + 16 * s + 2 * j, 2), vDo, S(sD, 4), sT + 3))
    a("    s_cmp_lg_u32 s%d, 0" % sNoSig)
    a("    s_cbranch_scc1 LH_ready")
    a("    s_lshl_b32 s%d, s%d, 2" % (sT + 2, sP))
    a("    v_mov_b32 v%d, s%d" % (vT, sT + 2))
    a("    s_mov_b32 s%d, %d" % (sT + 3, SPIN_MAX))
    a("LH_spin:")
    a("    buffer_load_dword v%d, v%d, %s, 0 offen sc1" % (vT + 1, vT, S(sDbg, 4)))
    a("    s_waitcnt vmcnt(0)")
    a("    v_readfirstlane_b32 s%d, v%d" % (sT + 2, vT + 1))
    a("    s_nop 3")
    a("    s_cmp_ge_u32 s%d, 8" % (sT + 2))
    a("    s_cbranch_scc1 LH_ready")
    a("    s_sleep 32")
    a("    s_sub_u32 s%d, s%d, 1" % (sT + 3, sT + 3))
    a("    s_cmp_lg_u32 s%d, 0" % (sT + 3))
    a("    s_cbranch_scc1 LH_spin")
    a("    s_lshl_b32 s%d, s%d, 3" % (sGp, sP))
    a("    s_add_u32 s%d, s%d, 8" % (sGe, sGp))
    a("    s_mov_b32 s%d, 1" % sNoSig)
    a("    s_branch LH_gloop")
    a("LH_ready:")
    a("    s_mov_b32 s%d, 0" % sNoSig)
    a("    v_lshlrev_b32 v%d, 3, v%d" % (vT, vL))
    a("    s_lshl_b32 s%d, s%d, 12" % (sT + 2, sP))
    a("    s_add_u32 s%d, s%d, %d" % (sT + 2, sT + 2, MOE_GU))
    for q in range(8):
        a("    buffer_load_dwordx2 %s, v%d, %s, s%d offen offset:%d sc1" % (V(vB + 2 * q, 2), vT, S(sWS, 4), sT + 2, 512 * q))
    a("    s_waitcnt vmcnt(0)")
    for e in range(2):
        for m in range(2):
            b = vB + 8 * m + e
            a("    v_add_f32 v%d, v%d, v%d" % (b, b, b + 2))
            a("    v_add_f32 v%d, v%d, v%d" % (b + 4, b + 4, b + 6))
            a("    v_add_f32 v%d, v%d, v%d" % (b, b, b + 4))
            o.append(cvt(b, "0", b))
        g_ = vB + e; u_ = vB + 8 + e; x = vT + 4 + e
        a("    v_mul_f32 v%d, 0x%x, v%d" % (x, f32bits(-LOG2E), g_))
        a("    v_exp_f32 v%d, v%d" % (x, x))
        a("    v_add_f32 v%d, 1.0, v%d" % (x, x))
        a("    v_rcp_f32 v%d, v%d" % (x, x))
        a("    v_mul_f32 v%d, v%d, v%d" % (x, x, g_))
        o.append(cvt(x, "0", x))
        a("    v_mul_f32 v%d, v%d, v%d" % (x, x, u_))
    o.append(cvt(vT + 4, vT + 4, vT + 5))
    for s in range(2):
        for q in range(4):
            a("    ds_bpermute_b32 v%d, v%d, v%d offset:%d" % (vB + 4 * s + q, vBp, vT + 4, 4 * (16 * s + q)))
    a("    v_mul_u32_u24 v%d, 2560, v%d" % (vT, vN16))
    a("    v_lshl_add_u32 v%d, v%d, 4, v%d" % (vT, vG, vT))
    a("    s_mul_i32 s%d, s%d, 5120" % (sT + 2, sP))
    a("    s_lshl_b32 s%d, s%d, 8" % (sT + 3, sC))
    a("    s_add_u32 s%d, s%d, s%d" % (sT + 2, sT + 2, sT + 3))
    a("    s_add_u32 s%d, s%d, %d" % (sT + 2, sT + 2, MOE_PART))
    a("    s_waitcnt lgkmcnt(0)")
    for s in range(2):
        for tp in range(2):
            o += perms(vFr, vW + 16 * s, tp, sLo, sHi)
            for tt in range(2):
                acc = vAcc + 4 * (2 * tp + tt)
                o.append(m16(acc, vFr + 4 * tt, vB + 4 * s, "0" if s == 0 else acc))
    a("    s_nop 7")
    a("    s_mov_b64 exec, %s" % S(sMask, 2))
    for t in range(4):
        a("    buffer_store_dwordx4 %s, v%d, %s, s%d offen offset:%d sc1" % (V(vAcc + 4 * t, 4), vT, S(sWS, 4), sT + 2, 64 * t))
    a("    s_mov_b64 exec, -1")
    a("    s_waitcnt vmcnt(0)")
    a("    s_lshl_b32 s%d, s%d, 2" % (sT + 2, sC))
    a("    s_add_u32 s%d, s%d, 128" % (sT + 2, sT + 2))
    a("    v_mov_b32 v%d, s%d" % (vT, sT + 2))
    a("    v_mov_b32 v%d, 1" % (vT + 1))
    a("    s_mov_b64 exec, 1")
    a("    buffer_atomic_add v%d, v%d, %s, 0 offen sc0" % (vT + 1, vT, S(sDbg, 4)))
    a("    s_waitcnt vmcnt(0)")
    a("    s_mov_b64 exec, -1")
    a("    v_readfirstlane_b32 s%d, v%d" % (sT + 2, vT + 1))
    a("    s_nop 3")
    a("    s_cmp_lg_u32 s%d, 26" % (sT + 2))
    a("    s_cbranch_scc1 LH_next")
    a("    v_lshrrev_b32 v%d, 5, v%d" % (vT, vL))
    a("    v_mul_u32_u24 v%d, 2560, v%d" % (vT + 3, vT))
    a("    v_and_b32 v%d, 31, v%d                      ; m : pi = 2m, 2m+1" % (vT + 2, vL))
    a("    v_lshl_add_u32 v%d, v%d, 3, v%d" % (vT + 1, vT + 2, vT + 3))
    a("    s_lshl_b32 s%d, s%d, 8" % (sT + 3, sC))
    a("    s_add_u32 s%d, s%d, %d" % (sT + 2, sT + 3, MOE_PART))
    for p in range(27):
        a("    buffer_load_dwordx2 %s, v%d, %s, s%d offen sc1" % (V(vW + 2 * p, 2), vT + 1, S(sWS, 4), sT + 2))
        a("    s_add_u32 s%d, s%d, 5120" % (sT + 2, sT + 2))
    a("    v_bfe_u32 v%d, v%d, 1, 2" % (vT + 6, vT + 2))
    a("    v_lshlrev_b32 v%d, 4, v%d" % (vT + 6, vT + 6))
    a("    v_and_b32 v%d, 1, v%d" % (vT + 7, vT + 2))
    a("    v_lshl_add_u32 v%d, v%d, 3, v%d" % (vT + 6, vT + 7, vT + 6))
    a("    v_lshrrev_b32 v%d, 3, v%d" % (vT + 7, vT + 2))
    a("    v_add_u32 v%d, v%d, v%d" % (vT + 6, vT + 6, vT + 7))
    a("    v_lshl_add_u32 v%d, v%d, 2, v%d" % (vT + 6, vT + 6, vT + 3))
    for rnd in range(2):
        a("    s_and_b32 s%d, s%d, 0xffff0000" % (sT + 4, sK0 + rnd))
        a("    s_ashr_i32 s%d, s%d, 31" % (sT + 5, sT + 4))
        a("    s_not_b32 s%d, s%d" % (sT + 5, sT + 5))
        a("    s_or_b32 s%d, s%d, 0x80000000" % (sT + 5, sT + 5))
        a("    s_xor_b32 s%d, s%d, s%d" % (sT + 4, sT + 4, sT + 5))
        a("    s_and_b32 s%d, s%d, 0xffff0000" % (sT + 6 + rnd, sT + 4))
    a("    v_cmp_eq_u32 vcc, 1, v%d" % vT)
    a("    v_mov_b32 v%d, s%d" % (vT + 4, sT + 6))
    a("    v_mov_b32 v%d, s%d" % (vT + 5, sT + 7))
    a("    v_cndmask_b32 v%d, v%d, v%d, vcc" % (vT + 4, vT + 4, vT + 5))
    x = vT + 4
    a("    v_mul_f32 v%d, 0x%x, v%d" % (x, f32bits(-LOG2E), x))
    a("    v_exp_f32 v%d, v%d" % (x, x))
    a("    v_add_f32 v%d, 1.0, v%d" % (x, x))
    a("    v_rcp_f32 v%d, v%d" % (x, x))
    o.append(cvt(x, "0", x))
    a("    s_waitcnt vmcnt(0)")
    for p in range(1, 27):
        for e in range(2):
            a("    v_add_f32 v%d, v%d, v%d" % (vW + e, vW + e, vW + 2 * p + e))
    for e in range(2):
        o.append(cvt(vW + e, "0", vW + e))
        a("    v_mul_f32 v%d, v%d, v%d" % (vW + e, vW + e, x))
        o.append(cvt(vW + e, "0", vW + e))
    a("    s_add_u32 s%d, s%d, %d" % (sT + 2, sT + 3, MOE_Y2))
    a("    buffer_store_dword v%d, v%d, %s, s%d offen" % (vW, vT + 6, S(sWS, 4), sT + 2))
    a("    buffer_store_dword v%d, v%d, %s, s%d offen offset:16" % (vW + 1, vT + 6, S(sWS, 4), sT + 2))
    a("LH_next:")
    a("    s_cmp_ge_u32 s%d, 256" % sDp)
    a("    s_cbranch_scc1 LH_exit")
    a("    s_add_u32 s%d, s%d, 40" % (sDp, sDp))
    a("    s_cmp_lt_u32 s%d, 256" % sDp)
    a("    s_cbranch_scc1 LH_exit")
    a("    s_cmp_ge_u32 s%d, 270" % sDp)
    a("    s_cbranch_scc1 LH_exit")
    a("    s_nop 1")
    a("    s_branch LH_gdone")
    a("LH_exit:")
    a("    s_endpgm")
    return autonop(o)

def k2_code(nohelp=False, level=3, **kw):
    c = ["    s_cmp_ge_u32 s2, 256", "    s_cbranch_scc1 LH_exit",
         "    v_readfirstlane_b32 s3, v0", "    s_nop 3", "    s_cmp_ge_u32 s3, 512", "    s_cbranch_scc1 %s" % ("LH_exit" if nohelp else "LH_start")]
    c += A.attn_code(**kw)
    c += helper_code(level)
    return c
```

```python
from asmlib import *
from common import *
from gen_k2e import MOE_Y2

RS = 336
WST = 64 * RS
K3_LDS = 4 * WST
ACC_OFF = 256
NV = ACC_OFF + 80

def k3_code(stamp=False):
    import stamps
    ST = (lambda i: stamps.st(i)) if stamp else (lambda i: [])
    FL = (lambda: ["    s_waitcnt vmcnt(0)"] + stamps.st(7) + stamps.flush(8, 52, 0x20000, ["    s_lshl_b32 s100, s2, 2", "    s_add_u32 s100, s100, s18"], 1)) if stamp else (lambda: [])
    o = []; a = o.append
    sWS, sX, sOut = 4, 8, 12
    sRB, sCB, sWv = 16, 17, 18
    sT = 24
    vLane, vN16, vG = 1, 2, 3
    vT = 4
    vX = 16; vXN = 26; vG2 = 36; vL = 41; vR = 46; vH = 52
    vO = 56
    vW = 136
    a("    s_cmp_ge_u32 s2, 256")
    a("    s_cbranch_scc1 LK3_exit")
    o += ST(0)
    a("    s_load_dwordx2 s[44:45], s[0:1], 0           ; x")
    a("    s_load_dwordx2 s[46:47], s[0:1], 64          ; out")
    a("    s_load_dwordx2 s[52:53], s[0:1], 80          ; ws")
    a("    s_and_b32 s%d, s2, 7" % sRB)
    a("    s_lshl_b32 s%d, s%d, 2" % (sRB, sRB))
    a("    s_lshr_b32 s%d, s2, 6" % sCB)
    a("    s_add_u32 s%d, s%d, s%d" % (sRB, sRB, sCB))
    a("    s_bfe_u32 s%d, s2, 0x30003" % sCB)
    a("    v_and_b32 v%d, 63, v0" % vLane)
    a("    v_lshrrev_b32 v%d, 6, v0" % vT)
    a("    v_and_b32 v%d, 15, v0" % vN16)
    a("    v_bfe_u32 v%d, v0, 4, 2" % vG)
    a("    v_readfirstlane_b32 s%d, v%d" % (sWv, vT))
    a("    v_lshlrev_b32 v%d, 4, v%d" % (vT + 1, vLane))
    a("    s_mul_i32 s%d, s%d, %d" % (sT, sRB, 80 * 1024))
    a("    s_mul_i32 s%d, s%d, %d" % (sT + 1, sWv, 5 * 1024))
    a("    s_add_u32 s%d, s%d, s%d" % (sT, sT, sT + 1))
    a("    s_add_u32 s%d, s%d, %d" % (32, sT, WS_O))
    for rt in range(1, 4): a("    s_add_u32 s%d, s%d, %d" % (32 + rt, 32, rt * 20 * 1024))
    for rt in range(4): a("    s_add_u32 s%d, s%d, 4096" % (56 + rt, 32 + rt))
    a("    s_lshl_b32 s%d, s%d, 2" % (sT, sCB))
    a("    s_add_u32 s%d, s%d, s%d" % (sT, sT, sWv))
    a("    s_mul_i32 s%d, s%d, %d" % (sT, sT, 25 * 1024))
    a("    s_add_u32 s%d, s%d, %d" % (sT, sT, WS_WO))
    a("    s_waitcnt lgkmcnt(0)")
    o += ST(1)
    a("    s_add_u32 s48, s52, %d" % WS_MOE)
    a("    s_addc_u32 s49, s53, 0")
    a("    s_load_dwordx2 s[36:37], s[48:49], 0")
    for srd, p, n in ((sX, 44, TOK * ROWB), (sOut, 46, TOK * ROWB), (sWS, 52, 0x1000000)):
        a("    s_mov_b32 s%d, s%d" % (srd, p)); a("    s_mov_b32 s%d, s%d" % (srd + 1, p + 1))
        a("    s_mov_b32 s%d, %d" % (srd + 2, n)); a("    s_mov_b32 s%d, 0x00020000" % (srd + 3))
    for s in range(5):
        a("    s_add_u32 s%d, s%d, %d" % (sT + 1, sT, s * 5 * 1024))
        a("    s_add_u32 s%d, s%d, %d" % (sT + 2, sT, s * 5 * 1024 + 4096))
        for rt in range(4):
            a("    buffer_load_dwordx4 %s, v%d, %s, s%d offen offset:%d" % (V(vO + 16 * s + 4 * rt, 4), vT + 1, S(sWS, 4), (32 if s < 4 else 56) + rt, 1024 * (s & 3)))
        for ct in range(5):
            a("    buffer_load_dwordx4 %s, v%d, %s, s%d offen offset:%d" % (V(vW + 20 * s + 4 * ct, 4), vT + 1, S(sWS, 4), sT + 1 if ct < 4 else sT + 2, 1024 * (ct & 3)))
    for q in range(5):
        a("    v_add_u32 v%d, %d, v0" % (vT + 2, 256 * q))
        a("    v_mul_u32_u24 v%d, 3277, v%d" % (vT + 3, vT + 2))
        a("    v_lshrrev_b32 v%d, 16, v%d" % (vR + q, vT + 3))
        a("    v_mul_u32_u24 v%d, 20, v%d" % (vT + 4, vR + q))
        a("    v_sub_u32 v%d, v%d, v%d" % (vT + 4, vT + 2, vT + 4))
        a("    v_mul_u32_u24 v%d, %d, v%d" % (vL + q, RS, vR + q))
        a("    v_lshl_add_u32 v%d, v%d, 4, v%d" % (vL + q, vT + 4, vL + q))
        a("    v_mul_u32_u24 v%d, 0x500, v%d" % (vG2 + q, vR + q))
        a("    v_lshl_add_u32 v%d, v%d, 3, v%d" % (vG2 + q, vT + 4, vG2 + q))
    a("    s_mul_i32 s%d, s%d, %d" % (sT + 1, sRB, 64 * ROWB))
    a("    s_mul_i32 s%d, s%d, 160" % (sT + 2, sCB))
    a("    s_add_u32 s%d, s%d, s%d" % (sT + 1, sT + 1, sT + 2))
    a("    s_add_u32 s%d, s%d, %d" % (sT + 2, sT + 1, WS_XN))
    for q in range(5):
        a("    buffer_load_dwordx2 %s, v%d, %s, s%d offen" % (V(vX + 2 * q, 2), vG2 + q, S(sX, 4), sT + 1))
        a("    buffer_load_dwordx2 %s, v%d, %s, s%d offen" % (V(vXN + 2 * q, 2), vG2 + q, S(sWS, 4), sT + 2))
    a("    s_waitcnt lgkmcnt(0)")
    a("    s_mov_b32 s38, 0")
    a("    s_lshr_b32 s%d, s36, 6" % (sT + 3))
    a("    s_lshr_b32 s%d, s37, 6" % (sT + 4))
    a("    s_cmp_eq_u32 s%d, s%d" % (sT + 3, sRB))
    a("    s_cbranch_scc1 LK3_moe")
    a("    s_cmp_eq_u32 s%d, s%d" % (sT + 4, sRB))
    a("    s_cbranch_scc1 LK3_moe")
    a("LK3_back:")
    a("    v_mul_u32_u24 v%d, %d, v%d" % (vT, RS, vN16))
    a("    v_lshl_add_u32 v%d, v%d, 4, v%d" % (vT, vG, vT))
    a("    s_mul_i32 s%d, s%d, %d" % (sT, sWv, WST))
    a("    v_add_u32 v%d, s%d, v%d" % (vT, sT, vT))
    for s in range(5):
        a("    s_waitcnt vmcnt(%d)" % (10 + 9 * (4 - s)))
        if s == 0: o += ST(2)
        if s == 4: o += ST(3)
        for rt in range(4):
            for ct in range(5):
                k = 4 * (5 * rt + ct)
                acc = "a[%d:%d]" % (k, k + 3)
                a("    v_mfma_f32_16x16x32_bf16 %s, %s, %s, %s" % (acc, V(vW + 20 * s + 4 * ct, 4), V(vO + 16 * s + 4 * rt, 4), "0" if s == 0 else acc))
    a("    s_nop 7")
    for rt in range(4):
        for ct in range(5):
            k = 4 * (5 * rt + ct)
            a("    ds_write_b128 v%d, a[%d:%d] offset:%d" % (vT, k, k + 3, rt * 16 * RS + 64 * ct))
    o += ST(4)
    a("    s_waitcnt lgkmcnt(0)")
    a("    s_barrier")
    o += ST(5)
    if stamp: a("    s_waitcnt lgkmcnt(0)")
    vS = 56
    for q in range(5):
        for w in range(4):
            a("    ds_read_b128 %s, v%d offset:%d" % (V(vS + 16 * q + 4 * w, 4), vL + q, w * WST))
    a("    s_waitcnt vmcnt(0)")
    for q in range(5):
        b = vS + 16 * q
        a("    s_waitcnt lgkmcnt(%d)" % min(15, 4 * (4 - q)))
        for e in range(4):
            a("    v_add_f32 v%d, v%d, v%d" % (b + e, b + e, b + 4 + e))
            a("    v_add_f32 v%d, v%d, v%d" % (b + 8 + e, b + 8 + e, b + 12 + e))
            a("    v_add_f32 v%d, v%d, v%d" % (b + e, b + e, b + 8 + e))
            o.append(cvt(b + e, "0", b + e))
        for h in range(2):
            a("    v_lshlrev_b32 v%d, 16, v%d" % (b + 4 + 2 * h, vX + 2 * q + h))
            a("    v_and_b32 v%d, 0xffff0000, v%d" % (b + 5 + 2 * h, vX + 2 * q + h))
            a("    v_lshlrev_b32 v%d, 16, v%d" % (b + 8 + 2 * h, vXN + 2 * q + h))
            a("    v_and_b32 v%d, 0xffff0000, v%d" % (b + 9 + 2 * h, vXN + 2 * q + h))
        for e in range(4):
            a("    v_add_f32 v%d, v%d, v%d" % (b + e, b + e, b + 4 + e))
            o.append(cvt(b + e, "0", b + e))
    a("    s_cmp_eq_u32 s38, 0")
    a("    s_cbranch_scc1 LK3_fin")
    for q in range(5):
        b = vS + 16 * q
        for e in range(4):
            a("    v_add_f32 v%d, v%d, v%d" % (b + 8 + e, b + 8 + e, 236 + 4 * q + e))
            o.append(cvt(b + 8 + e, "0", b + 8 + e))
    a("LK3_fin:")
    for q in range(5):
        b = vS + 16 * q
        for e in range(4):
            a("    v_add_f32 v%d, v%d, v%d" % (b + e, b + e, b + 8 + e))
        o.append(cvt(b + 4, b, b + 1)); o.append(cvt(b + 5, b + 2, b + 3))
        a("    buffer_store_dwordx2 %s, v%d, %s, s%d offen" % (V(b + 4, 2), vG2 + q, S(sOut, 4), sT + 1))
    o += ST(6) + FL()
    a("LK3_exit:")
    a("    s_endpgm")
    code = autonop(o); o = []; a = o.append
    a("LK3_moe:")
    a("    s_mov_b32 s38, 1")
    for r in range(20): a("    v_mov_b32 v%d, 0" % (236 + r))
    for tok in range(2):
        a("    s_lshr_b32 s%d, s%d, 6" % (sT + 3, 36 + tok))
        a("    s_cmp_lg_u32 s%d, s%d" % (sT + 3, sRB))
        a("    s_cbranch_scc1 LK3_nomoe%d" % tok)
        a("    s_and_b32 s%d, s%d, 63" % (sT + 3, 36 + tok))
        a("    s_mul_i32 s%d, s%d, 320" % (sT + 4, sCB))
        a("    s_add_u32 s%d, s%d, %d" % (sT + 4, sT + 4, MOE_Y2 + tok * 2560))
        a("    s_mul_i32 s%d, s%d, %d" % (sT + 5, sT + 3, 2 * ROWB))
        for q in range(5):
            a("    v_lshlrev_b32 v%d, 1, v%d" % (vT + 2, vG2 + q))
            a("    v_subrev_u32 v%d, s%d, v%d" % (vT + 2, sT + 5, vT + 2))
            a("    v_cmp_eq_u32 vcc, s%d, v%d" % (sT + 3, vR + q))
            a("    s_and_saveexec_b64 s[40:41], vcc")
            a("    s_cbranch_execz LK3_skip%d_%d" % (tok, q))
            a("    buffer_load_dwordx4 %s, v%d, %s, s%d offen" % (V(236 + 4 * q, 4), vT + 2, S(sWS, 4), sT + 4))
            a("LK3_skip%d_%d:" % (tok, q))
            a("    s_mov_b64 exec, s[40:41]")
        a("LK3_nomoe%d:" % tok)
    a("    s_branch LK3_back")
    code += autonop(["    s_nop 4"] + o)
    return code
```

```python
from common import *
S0 = 64
def st(i):
    return ["    s_memrealtime s[%d:%d]" % (S0 + 2 * i, S0 + 2 * i + 1)]
def flush(n, ws_lo, region, slot_expr_lines, vtmp):
    o = ["    s_waitcnt lgkmcnt(0)"] + slot_expr_lines
    o += ["    s_add_u32 s96, s%d, %d" % (ws_lo, WS_DBG + region), "    s_addc_u32 s97, s%d, 0" % (ws_lo + 1), "    s_mov_b32 s98, 0x40000", "    s_mov_b32 s99, 0x00020000",
          "    s_lshl_b32 s100, s100, 6", "    s_mov_b64 exec, 1", "    v_mov_b32 v%d, s100" % vtmp]
    for i in range(n):
        o += ["    v_mov_b32 v%d, s%d" % (vtmp + 1, S0 + 2 * i), "    buffer_store_dword v%d, v%d, s[96:99], 0 offen offset:%d" % (vtmp + 1, vtmp, 4 * i), "    s_nop 1"]
    o += ["    s_mov_b64 exec, -1"]
    return o
```

```python
import sys
from common import *
import gen_k1e, gen_k2e, gen_k3c, gen_attn3
HEAD = open("parallel_sum__softmax_full_mha__moe_arch_mod__prompt.s.ref").read().split("; Override launch")[0]
KD2 = KD.replace(".amdhsa_accum_offset {nv}", ".amdhsa_accum_offset {ao}")
def kern(name, code, nv, ns, ao=None):
    return ".globl %s\n.p2align 8\n.type %s,@function\n%s:\n" % (name, name, name) + "\n".join(code) + "\n" + KD2.format(name=name, nv=nv, ns=ns, ao=ao or nv)
def build(path, which=("k1","k2","k3"), stamp=False, **kw):
    launches = []; body = ""
    if "k1" in which:
        launches.append("; @launch kernel=k1_kernel grid=(256,1,1) block=(512,1,1) lds=%d" % gen_k1e.K1_LDS)
        body += kern("k1_kernel", gen_k1e.k1_code(stamp=stamp), gen_k1e.NV, 102 if stamp else 64)
    if "k2" in which:
        launches.append("; @launch kernel=k2_kernel grid=(%d,1,1) block=(576,1,1) lds=%d" % (gen_k2e.GRID, gen_k2e.K2_LDS))
        body += kern("k2_kernel", gen_k2e.k2_code(stamp2=stamp, **kw), gen_attn3.NVGPR, 102 if stamp else 72)
    if "k3" in which:
        launches.append("; @launch kernel=k3_kernel grid=(256,1,1) block=(256,1,1) lds=%d" % gen_k3c.K3_LDS)
        body += kern("k3_kernel", gen_k3c.k3_code(stamp=stamp), gen_k3c.NV, 102 if stamp else 64, gen_k3c.ACC_OFF)
    txt = HEAD + "\n".join(launches) + "\n.amdgcn_target \"amdgcn-amd-amdhsa--gfx950\"\n.text\n" + body
    open(path, "w").write(txt)
if __name__ == "__main__":
    build(sys.argv[1], which=sys.argv[2].split(",") if len(sys.argv) > 2 else ("k1","k2","k3"))
```

```python
import struct, math
from asmlib import *
from common import *

BIAS = 80.0
vK0a, vK1a, vVa = 1, 2, 3
vQ0 = [4, 8]; vQ1 = [12, 14]
vP = 16
vT = 24
vS = [32, 48]
vO = [64, 80]
vKV = [96, 112]
NVGPR = 128
sKV, sQ, sO = 4, 8, 12
sOffK, sCnt = 16, 20
sVm = 18
sHf = 21
sT = 28
ATT_LDS = 163840
UNR = 4

def rdK(st, off):
    b = vKV[st]
    return ["    ds_read_b128 %s, v%d offset:%d" % (V(b, 4), vK0a, off),
            "    s_mov_b32 exec_hi, 0",
            "    ds_read_b64 %s, v%d offset:%d" % (V(b + 12, 2), vK1a, off),
            "    s_mov_b32 exec_hi, -1"]
def rdV(st, off):
    b = vKV[st]
    return ["    s_mov_b64 exec, %s" % S(sVm, 2),
            "    ds_read_b128 %s, v%d offset:%d" % (V(b + 4, 4), vVa, off),
            "    ds_read_b128 %s, v%d offset:%d" % (V(b + 8, 4), vVa, off + 640),
            "    s_mov_b64 exec, -1"]
def ldK(st, soff):
    b = vKV[st]
    return ["    buffer_load_dwordx4 %s, v%d, %s, s%d offen" % (V(b, 4), vK0a, S(sKV, 4), soff),
            "    s_mov_b32 exec_hi, 0",
            "    buffer_load_dwordx2 %s, v%d, %s, s%d offen" % (V(b + 12, 2), vK1a, S(sKV, 4), soff),
            "    s_mov_b32 exec_hi, -1"]
def ldV(st, soff):
    b = vKV[st]
    return ["    s_mov_b64 exec, %s" % S(sVm, 2),
            "    buffer_load_dwordx4 %s, v%d, %s, s%d offen" % (V(b + 4, 4), vVa, S(sKV, 4), soff),
            "    buffer_load_dwordx4 %s, v%d, %s, s%d offen offset:640" % (V(b + 8, 4), vVa, S(sKV, 4), soff),
            "    s_mov_b64 exec, -1"]
def QKa(x, st): return mfma32(vS[x], vKV[st], vQ0[x], "0")
def QKb(x, st): return mfma328(vS[x], vKV[st] + 12, vQ1[x], vS[x])
def PV(x, st, c): return mfma32(vO[x], vKV[st] + 4 + 4 * c, vP + 4 * c, vO[x])
def E(x, k): return ["    v_exp_f32 v%d, v%d" % (vS[x] + 4 * k + i, vS[x] + 4 * k + i) for i in range(4)]
def C(x, k): return [cvt(vP + 2 * k, vS[x] + 4 * k, vS[x] + 4 * k + 1), cvt(vP + 2 * k + 1, vS[x] + 4 * k + 2, vS[x] + 4 * k + 3)]

def tile_body(j):
    st = j & 1
    o = []
    o += C(1, 3) + [QKa(1, st)] + E(0, 0)
    o += C(0, 0) + [QKb(1, st)] + rdK(st, (j + 2) * KV_REC) + E(0, 1)
    o += C(0, 1) + [PV(1, st ^ 1, 1)] + rdV(st ^ 1, (j + 1) * KV_REC) + E(0, 2)
    o += C(0, 2) + ["    s_waitcnt lgkmcnt(4)", PV(0, st, 0)] + E(0, 3)
    o += C(0, 3) + [QKa(0, st ^ 1)] + E(1, 0)
    o += C(1, 0) + [QKb(0, st ^ 1)] + E(1, 1)
    o += C(1, 1) + [PV(0, st, 1)] + E(1, 2)
    o += C(1, 2) + [PV(1, st, 0)] + E(1, 3)
    return o

def addr_setup(a):
    a("    v_lshlrev_b32 v%d, 4, v%d" % (vK0a, vT))
    a("    v_lshlrev_b32 v%d, 3, v%d" % (vK1a, vT + 2))
    a("    v_add_u32 v%d, 1024, v%d" % (vK1a, vK1a))
    a("    v_mul_u32_u24 v%d, 20, v%d" % (vVa, vT + 3))
    a("    v_add_u32 v%d, v%d, v%d" % (vVa, vVa, vT + 2))
    a("    v_lshlrev_b32 v%d, 4, v%d" % (vVa, vVa))
    a("    v_add_u32 v%d, 1280, v%d" % (vVa, vVa))

def attn_code(force_fallback=False, lab="A", stamp2=False):
    import stamps
    ST = (lambda i: stamps.st(i) + ["    s_waitcnt lgkmcnt(0)"]) if stamp2 else (lambda i: [])
    FL = (lambda: ["    s_mov_b64 exec, -1", "    s_waitcnt vmcnt(0)"] + stamps.st(7) + stamps.flush(8, 22, 0x40000, ["    s_lshl_b32 s100, s24, 5", "    s_add_u32 s100, s100, s25", "    s_lshl_b32 s100, s100, 1", "    s_add_u32 s100, s100, s21"], 1)) if stamp2 else (lambda: [])
    o = ST(0); a = o.append
    a("    s_setprio 3")
    a("    s_load_dwordx2 s[22:23], s[0:1], 80          ; ws")
    a("    v_and_b32 v%d, 63, v0" % vT)
    a("    v_lshrrev_b32 v%d, 6, v0" % (vT + 1))
    a("    s_and_b32 s24, s2, 7")
    a("    s_lshr_b32 s25, s2, 3")
    a("    s_and_b32 s26, s25, 3")
    a("    s_lshl_b32 s24, s24, 2")
    a("    s_add_u32 s24, s24, s26                     ; head")
    a("    s_lshr_b32 s25, s25, 2")
    a("    v_readfirstlane_b32 s26, v%d" % (vT + 1))
    a("    s_lshl_b32 s25, s25, 2")
    a("    s_lshr_b32 s%d, s26, 2                      ; key half" % sHf)
    a("    s_and_b32 s26, s26, 3")
    a("    s_add_u32 s25, s25, s26")
    a("    s_mul_i32 s27, s24, %d" % KV_HEAD)
    a("    v_and_b32 v%d, 31, v%d" % (vT + 2, vT))
    a("    v_lshrrev_b32 v%d, 5, v%d" % (vT + 3, vT))
    addr_setup(a)
    a("    v_cmp_gt_u32 %s, 20, v%d" % (S(sVm, 2), vT + 2))
    a("    s_mul_i32 s%d, s%d, %d" % (sOffK, sHf, 32 * KV_REC))
    a("    s_lshl_b32 s17, s26, 10")
    a("    s_add_u32 s17, s17, s%d                     ; first DMA piece offset" % sOffK)
    a("    s_mul_i32 s30, s24, %d" % Q_HEAD)
    a("    s_mul_i32 s26, s25, %d" % (2 * Q_REC))
    a("    s_add_u32 s30, s30, s26")
    for x in range(2):
        a("    v_mov_b32 v%d, 0" % vQ1[x]); a("    v_mov_b32 v%d, 0" % (vQ1[x] + 1))
    a("    s_waitcnt lgkmcnt(0)")
    o += ST(1)
    a("    s_add_u32 s%d, s22, s27" % sKV)
    a("    s_addc_u32 s%d, s23, 0" % (sKV + 1))
    a("    s_mov_b32 s%d, %d" % (sKV + 2, KV_HEAD))
    a("    s_mov_b32 s%d, 0x00020000" % (sKV + 3))
    a("    s_add_u32 s%d, s22, %d" % (sQ, WS_Q))
    a("    s_addc_u32 s%d, s23, 0" % (sQ + 1))
    a("    s_mov_b32 s%d, %d" % (sQ + 2, TOK * ROWB))
    a("    s_mov_b32 s%d, 0x00020000" % (sQ + 3))
    a("    s_add_u32 s%d, s22, %d" % (sO, WS_O))
    a("    s_addc_u32 s%d, s23, 0" % (sO + 1))
    a("    s_mov_b32 s%d, %d" % (sO + 2, TOK * ROWB))
    a("    s_mov_b32 s%d, 0x00020000" % (sO + 3))
    def dma():
        return ["    s_mov_b32 m0, s17", "    s_nop 0",
                "    buffer_load_dwordx4 v%d, %s, s17 offen lds" % (vK0a, S(sKV, 4)),
                "    s_add_u32 s17, s17, 4096"]
    NA = 4
    o += dma()
    a("    buffer_load_dwordx4 %s, v%d, %s, s30 offen" % (V(vQ0[0], 4), vK0a, S(sQ, 4)))
    a("    buffer_load_dwordx4 %s, v%d, %s, s30 offen offset:%d" % (V(vQ0[1], 4), vK0a, S(sQ, 4), Q_REC))
    a("    s_mov_b32 exec_hi, 0")
    a("    buffer_load_dwordx2 %s, v%d, %s, s30 offen" % (V(vQ1[0], 2), vK1a, S(sQ, 4)))
    a("    buffer_load_dwordx2 %s, v%d, %s, s30 offen offset:%d" % (V(vQ1[1], 2), vK1a, S(sQ, 4), Q_REC))
    a("    s_mov_b32 exec_hi, -1")
    for r in range(1, NA): o += dma()
    for st in range(2):
        a("    v_mov_b32 v%d, 0x3f80" % (vKV[st] + 12))
        a("    v_mov_b32 v%d, 0" % (vKV[st] + 13))
    a("    v_and_b32 v%d, 27, v%d" % (vT + 6, vT + 2))
    a("    v_cmp_eq_u32 vcc, 24, v%d" % (vT + 6))
    a("    v_mov_b32 v%d, 0x3f803f80" % (vT + 7))
    a("    v_cndmask_b32 v%d, 0, v%d, vcc" % (vT + 7, vT + 7))
    for st in range(2):
        for r in range(8): a("    v_mov_b32 v%d, v%d" % (vKV[st] + 4 + r, vT + 7))
    for x in range(2):
        for r in range(16): a("    v_mov_b32 v%d, 0" % (vO[x] + r))
    for r in range(8): a("    v_mov_b32 v%d, 0" % (vP + r))
    a("    s_waitcnt vmcnt(0)")
    a("    s_barrier                                   ; A: first %d KB of each half landed" % (4 * NA))
    o += ST(2)
    o += rdK(1, 0)
    a("    v_add_u32 v%d, s%d, v%d" % (vK1a, sOffK, vK1a))
    a("    v_add_u32 v%d, s%d, v%d" % (vVa, sOffK, vVa))
    a("    v_add_u32 v%d, s%d, v%d" % (vK0a, sOffK, vK0a))
    o += rdK(0, 0)
    a("    s_waitcnt lgkmcnt(2)")
    o += [QKa(0, 1), QKb(0, 1), QKa(1, 1), QKb(1, 1)]
    o += rdK(1, KV_REC)
    o += rdV(0, 0)
    a("    v_cmp_ne_u32 vcc, 0, v%d" % (vT + 3))
    for x in range(2):
        s = vS[x]; m = vT + 6 + x
        a("    v_max3_f32 v%d, v%d, v%d, v%d" % (m, s, s + 1, s + 2))
        for r in range(3, 15, 2):
            a("    v_max3_f32 v%d, v%d, v%d, v%d" % (m, m, s + r, s + r + 1))
        a("    v_max_f32 v%d, v%d, v%d" % (m, m, s + 15))
        a("    v_mov_b32 v%d, v%d" % (vT, m))
        a("    v_permlane32_swap_b32 v%d, v%d" % (m, vT))
        a("    v_max_f32 v%d, v%d, v%d" % (m, m, vT))
        a("    v_sub_f32 v%d, 0x%x, v%d" % (m, f32bits(-BIAS), m))
        o.append(cvt(m, m, "0"))
        a("    v_cndmask_b32 v%d, v%d, v%d, vcc" % (vQ1[x], vQ1[x], m))
    for r in range(4): a("    v_mov_b32 v%d, 0" % (vS[1] + 12 + r))
    a("    s_waitcnt lgkmcnt(4)")
    o += [QKa(0, 0), QKb(0, 0)]
    a("    s_mov_b32 s%d, %d" % (sCnt, 1 if force_fallback else 32 // UNR))
    a("    s_mov_b32 s17, 1")
    o += ST(3)
    if stamp2: o += ["    s_memtime s[66:67]", "    s_waitcnt lgkmcnt(0)"]
    a("    s_setprio 0")
    a("    s_nop 6")
    pro = autonop(o)
    body = sum((tile_body(j) for j in range(UNR)), [])
    tail = ["    v_add_u32 v%d, %d, v%d" % (r, UNR * KV_REC, r) for r in (vK0a, vK1a, vVa)]
    tail += ["    s_cmp_eq_u32 s17, 0", "    s_cbranch_scc1 L%s_nobar" % lab,
             "    s_mov_b32 s17, 0", "    s_waitcnt vmcnt(0)", "    s_barrier",
             "L%s_nobar:" % lab,
             "    s_sub_u32 s%d, s%d, 1" % (sCnt, sCnt), "    s_cmp_lg_u32 s%d, 0" % sCnt, "    s_cbranch_scc1 L%s_loop" % lab]
    bad = check(pro[-30:] + body + tail[:3] + body, "attn loop")
    assert not bad, "\n".join(bad)
    d = []; a = d.append
    d += C(1, 3) + [PV(1, 1, 1)] + ST(4)
    if stamp2: d += ["    s_memtime s[68:69]", "    s_waitcnt lgkmcnt(0)"]
    a("    s_waitcnt lgkmcnt(0)")
    a("    s_barrier")
    a("    s_and_b32 s26, s25, 3")
    a("    s_lshl_b32 s26, s26, 13")
    a("    s_lshl_b32 s27, s%d, 12" % sHf)
    a("    s_add_u32 s27, s27, s26")
    a("    s_xor_b32 s26, s27, 4096")
    a("    v_and_b32 v%d, 63, v0" % vT)
    a("    v_lshl_add_u32 v%d, v%d, 4, s27" % (vT + 6, vT))
    a("    v_lshl_add_u32 v%d, v%d, 4, s26" % (vT + 7, vT))
    a("    s_cmp_eq_u32 s%d, 0" % sHf)
    a("    s_cbranch_scc0 L%s_up" % lab)
    for q in range(4): a("    ds_write_b128 v%d, %s offset:%d" % (vT + 6, V(vO[1] + 4 * q, 4), 1024 * q))
    a("    s_branch L%s_xch" % lab)
    a("L%s_up:" % lab)
    for q in range(4): a("    ds_write_b128 v%d, %s offset:%d" % (vT + 6, V(vO[0] + 4 * q, 4), 1024 * q))
    a("    s_waitcnt lgkmcnt(0)")
    for r in range(13): a("    v_mov_b32 v%d, v%d" % (vO[0] + r, vO[1] + r))
    for r in range(4): a("    v_mov_b32 v%d, v%d" % (vQ0[0] + r, vQ0[1] + r))
    for r in range(2): a("    v_mov_b32 v%d, v%d" % (vQ1[0] + r, vQ1[1] + r))
    a("L%s_xch:" % lab)
    a("    s_waitcnt lgkmcnt(0)")
    a("    s_barrier")
    d += ST(5)
    for q in range(4): a("    ds_read_b128 %s, v%d offset:%d" % (V(vS[0] + 4 * q, 4), vT + 7, 1024 * q))
    a("    s_waitcnt lgkmcnt(0)")
    O = vO[0]
    for r in range(13): a("    v_add_f32 v%d, v%d, v%d" % (O + r, O + r, vS[0] + r))
    if force_fallback:
        a("    s_branch L%s_fallback" % lab)
    a("    v_add_f32 v%d, |v%d|, |v%d|" % (vT, O, O + 1))
    for r in range(2, 13): a("    v_add_f32 v%d, v%d, |v%d|" % (vT, vT, O + r))
    a("    v_mov_b32 v%d, 0x7f000000" % (vT + 1))
    a("    v_cmp_lt_f32 vcc, v%d, v%d" % (vT, vT + 1))
    a("    v_mov_b32 v%d, 0x03800000" % (vT + 1))
    a("    v_cmp_gt_f32 %s, v%d, v%d" % (S(sT, 2), O + 12, vT + 1))
    a("    s_nop 4")
    a("    s_and_b64 vcc, vcc, %s" % S(sT, 2))
    a("    s_cmp_eq_u64 vcc, exec")
    a("    s_cbranch_scc0 L%s_fallback" % lab)
    drain = autonop(body[-30:] + tail + d[:3] + ["    s_nop 15"] + d[3:])[30 + len(tail):]
    ep = []; a = ep.append
    a("L%s_epi:" % lab)
    a("    v_rcp_f32 v%d, v%d" % (vT, O + 12))
    for r in range(12): a("    v_mul_f32 v%d, v%d, v%d" % (O + r, O + r, vT))
    for r in range(6): ep.append(cvt(vP + r, O + 2 * r, O + 2 * r + 1))
    a("    s_lshl_b32 s26, s25, 6")
    a("    s_lshl_b32 s27, s%d, 5" % sHf)
    a("    s_add_u32 s26, s26, s27")
    a("    v_add_u32 v%d, s26, v%d" % (vT + 5, vT + 2))
    a("    v_lshrrev_b32 v%d, 4, v%d" % (vT + 6, vT + 5))
    a("    v_mul_u32_u24 v%d, %d, v%d" % (vT + 6, 20 * 1024, vT + 6))
    a("    v_and_b32 v%d, 15, v%d" % (vT + 5, vT + 5))
    a("    v_lshl_add_u32 v%d, v%d, 4, v%d" % (vT + 6, vT + 5, vT + 6))
    a("    s_mul_i32 s26, s24, 5")
    a("    v_add_u32 v%d, s26, v%d" % (vT + 5, vT + 3))
    for pc in range(3):
        if pc: a("    v_add_u32 v%d, 2, v%d" % (vT + 5, vT + 5))
        a("    v_lshrrev_b32 v%d, 1, v%d" % (vT + 7, vT + 5))
        a("    v_lshl_add_u32 v%d, v%d, 8, v%d" % (vT + 7, vT + 7, vT + 6))
        a("    v_and_b32 v%d, 1, v%d" % (vT + 1, vT + 5))
        a("    v_lshl_add_u32 v%d, v%d, 3, v%d" % (vT + 7, vT + 1, vT + 7))
        if pc == 2: a("    s_mov_b32 exec_hi, 0")
        a("    buffer_store_dwordx2 %s, v%d, %s, 0 offen" % (V(vP + 2 * pc, 2), vT + 7, S(sO, 4)))
    ep += ST(6) + FL()
    a("    s_endpgm")
    ep = autonop(ep)
    fb = []; a = fb.append
    M = vT + 6
    a("L%s_fallback:" % lab)
    a("    s_waitcnt vmcnt(0) lgkmcnt(0)")
    a("    v_and_b32 v%d, 63, v0" % vT)
    addr_setup(a)
    a("    v_cmp_eq_u32 vcc, 0, v%d" % (vT + 3))
    a("    v_mov_b32 v%d, 0xff800000" % M)
    a("    v_cndmask_b32 v%d, 0, v%d, vcc" % (vQ1[0], vQ1[0]))
    a("    s_mov_b32 s%d, 0" % sOffK)
    a("    s_mov_b32 s%d, 64" % sCnt)
    a("L%s_fb1:" % lab)
    fb += ldK(0, sOffK)
    a("    s_waitcnt vmcnt(0)")
    fb += [QKa(0, 0), QKb(0, 0)]
    for r in range(0, 16, 2):
        a("    v_max3_f32 v%d, v%d, v%d, v%d" % (M, M, vS[0] + r, vS[0] + r + 1))
    a("    s_add_u32 s%d, s%d, %d" % (sOffK, sOffK, KV_REC))
    a("    s_sub_u32 s%d, s%d, 1" % (sCnt, sCnt))
    a("    s_cmp_lg_u32 s%d, 0" % sCnt)
    a("    s_nop 7")
    a("    s_cbranch_scc1 L%s_fb1" % lab)
    a("    v_mov_b32 v%d, v%d" % (M + 1, M))
    a("    v_permlane32_swap_b32 v%d, v%d" % (M, M + 1))
    a("    v_max_f32 v%d, v%d, v%d" % (M, M, M + 1))
    for r in range(16): a("    v_mov_b32 v%d, 0" % (O + r))
    a("    s_mov_b32 s%d, 0" % sOffK)
    a("    s_mov_b32 s%d, 64" % sCnt)
    a("L%s_fb2:" % lab)
    fb += ldK(0, sOffK)
    fb += ldV(0, sOffK)
    a("    s_waitcnt vmcnt(0)")
    fb += [QKa(0, 0), QKb(0, 0)]
    for r in range(16):
        x = vS[0] + r
        a("    v_sub_f32 v%d, v%d, v%d" % (x, x, M))
        a("    v_exp_f32 v%d, v%d" % (x, x))
    for k in range(4): fb += C(0, k)
    fb += [PV(0, 0, 0), PV(0, 0, 1)]
    a("    s_add_u32 s%d, s%d, %d" % (sOffK, sOffK, KV_REC))
    a("    s_sub_u32 s%d, s%d, 1" % (sCnt, sCnt))
    a("    s_cmp_lg_u32 s%d, 0" % sCnt)
    a("    s_nop 15")
    a("    s_cbranch_scc1 L%s_fb2" % lab)
    a("    s_nop 15")
    a("    s_branch L%s_epi" % lab)
    fb = autonop(fb)
    return pro + ["    .p2align 6", "L%s_loop:" % lab] + body + tail + drain + ep + fb
```

```python
from asmlib import *
from common import *

LDS_ROW = 336
LDS_PLANE = 64 * LDS_ROW
L_RS = 0
L_X = 512
L_EX = L_X + 4 * LDS_PLANE
K1_LDS = L_EX + 65536
RING = 7

vLane, vN16, vG = 1, 2, 3
vWoff = 4
vXoff = 5
vLw = 6
vLr = 11
vAI = 12
vOne = 14
vNegM = 16
vSum = 20
vSq = 24
vT = 28
vWraw = 40
vAcc = 152
vFr = 216
vXf = 224
NV = 256
XB = [152, 172]
vD = 192

sX, sW, sWS = 4, 8, 12
sRB, sCB, sWv, sWi, sKh = 16, 17, 18, 19, 41
sJ = 20
sT = 24
sSelLo, sSelHi = 30, 31
sWr = 36
sCnt = 40

def wloads(slot):
    b = vWraw + 16 * slot
    o = []
    for j in range(8):
        o.append("    buffer_load_dwordx2 %s, v%d, %s, s%d offen%s" % (V(b + 2 * j, 2), vWoff, S(sW, 4), sJ + (j >> 1), " offset:3840" if j & 1 else ""))
    for q in range(4):
        o.append("    s_add_u32 s%d, s%d, %d" % (sJ + q, sJ + q, 8 * 3840))
    return o

def k1_code(stamp=False):
    import stamps
    ST = (lambda i: stamps.st(i)) if stamp else (lambda i: [])
    FL = (lambda: ["    s_waitcnt vmcnt(0)"] + stamps.st(7) + stamps.flush(8, 52, 0, ["    s_lshl_b32 s100, s2, 3", "    s_add_u32 s100, s100, s%d" % sWv], 1)) if stamp else (lambda: [])
    o = []; a = o.append
    a("    s_cmp_ge_u32 s2, 256")
    a("    s_cbranch_scc1 LK1_exit")
    o += ST(0)
    a("    s_load_dwordx4 s[44:47], s[0:1], 0           ; x, wqkv")
    a("    s_load_dwordx2 s[50:51], s[0:1], 32          ; w_r")
    a("    s_load_dwordx2 s[52:53], s[0:1], 80          ; ws")
    a("    s_bfe_u32 s%d, s2, 0x20001" % sRB)
    a("    s_lshl_b32 s%d, s%d, 3" % (sRB, sRB))
    a("    s_lshr_b32 s%d, s2, 5" % sT)
    a("    s_add_u32 s%d, s%d, s%d" % (sRB, sRB, sT))
    a("    s_and_b32 s%d, s2, 1" % sCB)
    a("    s_lshl_b32 s%d, s%d, 2" % (sCB, sCB))
    a("    s_bfe_u32 s%d, s2, 0x20003" % sT)
    a("    s_add_u32 s%d, s%d, s%d" % (sCB, sCB, sT))
    a("    v_and_b32 v%d, 63, v0" % vLane)
    a("    v_lshrrev_b32 v%d, 6, v0" % vT)
    a("    v_and_b32 v%d, 15, v0" % vN16)
    a("    v_bfe_u32 v%d, v0, 4, 2" % vG)
    a("    v_readfirstlane_b32 s%d, v%d" % (sWv, vT))
    a("    s_mov_b32 s%d, 0x05040100" % sSelLo)
    a("    s_mov_b32 s%d, 0x07060302" % sSelHi)
    a("    s_lshl_b32 s%d, s%d, 6" % (sT, sRB))
    a("    s_lshl_b32 s%d, s%d, 3                       ; local first row = 8*wave" % (sT + 1, sWv))
    a("    s_add_u32 s%d, s%d, s%d" % (sT, sT, sT + 1))
    a("    v_add_u32 v%d, s%d, v%d" % (vT, sT, vG))
    a("    v_mul_u32_u24 v%d, 0x500, v%d" % (vXoff, vT))
    a("    v_lshl_add_u32 v%d, v%d, 4, v%d" % (vXoff, vN16, vXoff))
    a("    s_lshr_b32 s%d, s%d, 2                       ; K half" % (sKh, sWv))
    a("    s_and_b32 s%d, s%d, 3" % (sT + 4, sWv))
    a("    s_lshl_b32 s%d, s%d, 2" % (sWi, sCB))
    a("    s_add_u32 s%d, s%d, s%d                      ; W index 0..31" % (sWi, sWi, sT + 4))
    a("    s_lshl_b32 s%d, s%d, 7" % (sT + 4, sWi))
    a("    s_mul_i32 s%d, s%d, %d" % (sT + 5, sKh, 80 * 3840))
    a("    s_add_u32 s%d, s%d, s%d" % (sT + 4, sT + 4, sT + 5))
    a("    s_mov_b32 s%d, %d" % (sT + 5, 160 * 3840))
    a("    v_mul_lo_u32 v%d, v%d, s%d" % (vWoff, vG, sT + 5))
    a("    v_lshl_add_u32 v%d, v%d, 3, v%d" % (vWoff, vN16, vWoff))
    a("    v_add_u32 v%d, s%d, v%d" % (vWoff, sT + 4, vWoff))
    for q in range(4): a("    s_mov_b32 s%d, %d" % (sJ + q, 2 * q * 3840))
    a("    s_waitcnt lgkmcnt(0)")
    o += ST(1)
    for srd, p, n in ((sX, 44, TOK * ROWB), (sW, 46, 640 * 3840), (sWr, 50, 1280), (sWS, 52, 0x1000000)):
        a("    s_mov_b32 s%d, s%d" % (srd, p)); a("    s_mov_b32 s%d, s%d" % (srd + 1, p + 1))
        a("    s_mov_b32 s%d, %d" % (srd + 2, n)); a("    s_mov_b32 s%d, 0x00020000" % (srd + 3))
    for rg in range(2):
        a("    s_mov_b32 s%d, %d" % (sT + 2, rg * 4 * ROWB))
        for j in range(5):
            a("    buffer_load_dwordx4 %s, v%d, %s, s%d offen offset:%d" % (V(XB[rg] + 4 * j, 4), vXoff, S(sX, 4), sT + 2, 256 * j))
    a("    s_cmp_ge_u32 s%d, 30" % sWi)
    a("    s_cselect_b32 s%d, 0, s%d" % (sW + 2, sW + 2))
    a("    s_barrier")
    NPRE = 2
    NLN = 4
    for st in range(NPRE): o += wloads(st)
    a("    v_add_u32 v%d, s%d, v%d                      ; local row (rg 0)" % (vT + 4, sT + 1, vG))
    a("    v_mul_u32_u24 v%d, %d, v%d" % (vT, LDS_ROW, vT + 4))
    a("    v_add_u32 v%d, %d, v%d" % (vT, L_X, vT))
    for j in range(5):
        a("    v_add_u32 v%d, %d, v%d" % (vT + 1, 16 * j, vN16))
        a("    v_mul_u32_u24 v%d, 205, v%d" % (vT + 2, vT + 1))
        a("    v_lshrrev_b32 v%d, 12, v%d" % (vT + 2, vT + 2))
        a("    v_mul_u32_u24 v%d, 20, v%d" % (vT + 3, vT + 2))
        a("    v_sub_u32 v%d, v%d, v%d" % (vT + 3, vT + 1, vT + 3))
        a("    v_mul_u32_u24 v%d, %d, v%d" % (vT + 2, LDS_PLANE, vT + 2))
        a("    v_lshl_add_u32 v%d, v%d, 4, v%d" % (vT + 3, vT + 3, vT + 2))
        a("    v_add_u32 v%d, v%d, v%d" % (vLw + j, vT + 3, vT))
    a("    v_lshlrev_b32 v%d, 2, v%d                    ; rs slot addr" % (vT + 11, vT + 4))
    a("    s_mul_i32 s%d, s%d, 160" % (sCnt, sKh))
    a("    s_add_u32 s%d, s%d, %d" % (sCnt, sCnt, L_X))
    a("    v_mul_u32_u24 v%d, %d, v%d" % (vLr, LDS_PLANE, vG))
    a("    v_mul_u32_u24 v%d, %d, v%d" % (vT, LDS_ROW, vN16))
    a("    v_add3_u32 v%d, v%d, v%d, s%d" % (vLr, vLr, vT, sCnt))
    a("    v_and_b32 v%d, 1, v%d" % (vT + 8, vLane))
    a("    v_cmp_eq_u32 s[58:59], 0, v%d" % (vT + 8))
    a("    v_lshlrev_b32 v%d, 4, v%d" % (vT + 8, vT + 8))
    a("    v_and_b32 v%d, 2, v%d" % (vT + 9, vLane))
    a("    v_cmp_eq_u32 s[54:55], 0, v%d" % (vT + 9))
    a("    v_mov_b32 v%d, 0x3f80" % (vT + 9))
    a("    v_lshlrev_b32 v%d, v%d, v%d" % (vT + 9, vT + 8, vT + 9))
    a("    v_cndmask_b32 v%d, 0, v%d, s[54:55]" % (vAI, vT + 9))
    a("    v_cndmask_b32 v%d, v%d, 0, s[54:55]" % (vAI + 1, vT + 9))
    a("    v_mov_b32 v%d, 0x3f803f80" % vOne)
    a("    v_mov_b32 v%d, 0x3f803f80" % (vOne + 1))
    a("    v_cmp_eq_u32 s[56:57], 0, v%d" % vN16)
    code = autonop(o)
    lncode = []
    for rg in range(2):
        o = []; a = o.append
        X = XB[rg]
        if rg == 0:
            a("    s_waitcnt vmcnt(%d)" % (8 * NPRE))
            o += ST(2)
        for i in range(10):
            o.append(mfma4(vSum, vOne, X + 2 * i, "0" if i == 0 else vSum))
            o.append(mfma4(vSq, X + 2 * i, X + 2 * i, "0" if i == 0 else vSq))
            a("    s_nop 0")
        a("    v_cndmask_b32 v%d, v%d, v%d, s[58:59]" % (vT + 2, vSq + 1, vSq))
        a("    v_cndmask_b32 v%d, v%d, v%d, s[58:59]" % (vT + 3, vSq + 3, vSq + 2))
        a("    v_cndmask_b32 v%d, v%d, v%d, s[54:55]" % (vT + 2, vT + 3, vT + 2))
        a("    v_mov_b32 v%d, v%d" % (vT, vSum))
        for sh in (8, 4, 2, 1):
            a("    v_add_f32_dpp v%d, v%d, v%d row_ror:%d row_mask:0xf bank_mask:0xf" % (vT, vT, vT, sh))
            a("    v_add_f32_dpp v%d, v%d, v%d row_ror:%d row_mask:0xf bank_mask:0xf" % (vT + 2, vT + 2, vT + 2, sh))
        a("    v_mul_f32 v%d, 0x%x, v%d" % (vT, f32bits(1.0 / 640), vT))
        o.append(cvt(vT + 1, "0", vT))
        for r in range(4): a("    v_sub_f32 v%d, 0, v%d" % (vNegM + r, vT + 1))
        a("    v_mul_f32 v%d, 0x%x, v%d" % (vT + 2, f32bits(1.0 / 640), vT + 2))
        a("    v_fma_f32 v%d, -v%d, v%d, v%d" % (vT + 2, vT, vT, vT + 2))
        stats = []; b = stats.append
        b("    v_max_f32 v%d, 0, v%d" % (vT + 2, vT + 2))
        stats.append(cvt(vT + 2, "0", vT + 2))
        b("    v_add_f32 v%d, 0x%x, v%d" % (vT + 2, f32bits(1e-5), vT + 2))
        stats.append(cvt(vT + 2, "0", vT + 2))
        b("    v_sqrt_f32 v%d, v%d" % (vT + 2, vT + 2))
        b("    s_nop 0")
        stats.append(cvt(vT + 2, "0", vT + 2))
        b("    v_rcp_f32 v%d, v%d" % (vT + 3, vT + 2))
        b("    s_nop 0")
        b("    v_fma_f32 v%d, -v%d, v%d, 1.0" % (vT + 4, vT + 2, vT + 3))
        b("    v_fma_f32 v%d, v%d, v%d, v%d" % (vT + 3, vT + 4, vT + 3, vT + 3))
        def D(i): return vD + 4 * (i & 3)
        seq = []
        for i in range(10 + 2):
            if i < 10: seq.append(mfma4(D(i), vAI, X + 2 * i, vNegM))
            if stats: seq.append(stats.pop(0))
            if i >= 2:
                seq += [cvt(X + 2 * (i - 2), D(i - 2), D(i - 2) + 1), cvt(X + 2 * (i - 2) + 1, D(i - 2) + 2, D(i - 2) + 3)]
                if (i - 2) & 1:
                    j = (i - 2) >> 1
                    seq.append("    ds_write_b128 v%d, %s offset:%d" % (vLw + j, V(X + 4 * j, 4), rg * 4 * LDS_ROW))
        o += seq + stats
        a("    s_mov_b64 exec, s[56:57]")
        a("    ds_write_b32 v%d, v%d offset:%d" % (vT + 11, vT + 3, L_RS + 16 * rg))
        a("    s_mov_b64 exec, -1")
        lncode += autonop(o)
    extra = sum((wloads(st) for st in range(NPRE, NLN)), [])
    n = len(lncode); k = len(extra); j = 0; inexec = False
    for i, l in enumerate(lncode):
        if "s_mov_b64 exec, s[56:57]" in l: inexec = True
        if not inexec and i >= 2:
            while j < k and j * (n - 6) <= (i - 2) * k:
                code.append(extra[j]); j += 1
        code.append(l)
        if "s_mov_b64 exec, -1" in l: inexec = False
    code += extra[j:]
    o = []; a = o.append
    o += ST(3)
    a("    s_waitcnt lgkmcnt(0)")
    a("    s_barrier")
    o += ST(4)
    if stamp: a("    s_waitcnt lgkmcnt(0)")
    a("    s_cmp_ge_u32 s%d, 30" % sWi)
    a("    s_cbranch_scc1 LK1_xn")
    a("    s_cmp_ge_u32 s%d, 20" % sWi)
    a("    s_cbranch_scc1 LK1_gemmV")
    code += o
    def gemm(vtype):
        def xreads(par, off):
            b = vXf + 16 * par
            return ["    ds_read_b128 %s, v%d offset:%d" % (V(b + 4 * rt, 4), vLr, rt * 16 * LDS_ROW + off) for rt in range(4)]
        FB = [vFr, 12]
        def pm(s, tp):
            raw = vWraw + 16 * (s % RING); f = FB[tp]
            return ["    v_perm_b32 v%d, v%d, v%d, s%d" % (f + 4 * tt + p, raw + 2 * (2 * p + 1) + tp, raw + 2 * (2 * p) + tp, sSelHi if tt else sSelLo) for tt in range(2) for p in range(4)]
        def mm(s, tp):
            xb = vXf + 16 * (s & 1); f = FB[tp]; r_ = []
            for tt in range(2):
                t = 2 * tp + tt
                for rt in range(4):
                    acc = vAcc + 16 * rt + 4 * t
                    c = "0" if s == 0 else acc
                    r_.append(m16(acc, xb + 4 * rt, f + 4 * tt, c) if vtype else m16(acc, f + 4 * tt, xb + 4 * rt, c))
            return r_
        def mix(m_, p_):
            r_ = []
            for i in range(8):
                r_.append(m_[i])
                if i < len(p_): r_.append(p_[i])
            return r_ + p_[8:]
        o = xreads(0, 0); a = o.append
        issued = NLN
        a("    s_waitcnt vmcnt(%d)" % (8 * (issued - 1)))
        o += pm(0, 0)
        for s in range(10):
            if s + 1 < 10: o += xreads((s + 1) & 1, 16 * (s + 1))
            a("    s_waitcnt lgkmcnt(%d)" % (4 if s + 1 < 10 else 0))
            o += mix(mm(s, 0), pm(s, 1))
            nxt = []
            for _ in range(2):
                if issued < 10 and issued - RING <= s:
                    nxt += wloads(issued % RING); issued += 1
            if s + 1 < 10:
                nxt += ["    s_waitcnt vmcnt(%d)" % (8 * (issued - s - 2))]
                m_ = mm(s, 1)
                o += m_[:2] + nxt + mix(m_[2:] + [None, None], pm(s + 1, 0))
                o[:] = [x for x in o if x is not None]
            else:
                o += mm(s, 1)
        a("    s_lshl_b32 s%d, s%d, 13" % (sT + 4, sWv))
        a("    s_add_u32 s%d, s%d, %d" % (sT + 4, sT + 4, L_EX))
        a("    s_xor_b32 s%d, s%d, 4" % (sT + 5, sWv))
        a("    s_lshl_b32 s%d, s%d, 13" % (sT + 5, sT + 5))
        a("    s_add_u32 s%d, s%d, %d" % (sT + 5, sT + 5, L_EX))
        a("    v_lshl_add_u32 v%d, v%d, 4, s%d" % (vT, vLane, sT + 4))
        a("    v_lshl_add_u32 v%d, v%d, 4, s%d" % (vT + 1, vLane, sT + 5))
        a("    s_nop 7")
        lab = "V" if vtype else "Q"
        a("    s_cmp_eq_u32 s%d, 0" % sKh)
        a("    s_cbranch_scc0 LK1_up%s" % lab)
        for q in range(8): a("    ds_write_b128 v%d, %s offset:%d" % (vT, V(vAcc + 32 + 4 * q, 4), 1024 * q))
        a("    s_branch LK1_x%s" % lab)
        a("LK1_up%s:" % lab)
        for q in range(8): a("    ds_write_b128 v%d, %s offset:%d" % (vT, V(vAcc + 4 * q, 4), 1024 * q))
        a("    s_waitcnt lgkmcnt(0)")
        for r in range(32): a("    v_mov_b32 v%d, v%d" % (vAcc + r, vAcc + 32 + r))
        a("LK1_x%s:" % lab)
        a("    s_waitcnt lgkmcnt(0)")
        a("    s_barrier")
        for q in range(8): a("    ds_read_b128 %s, v%d offset:%d" % (V(vAcc + 32 + 4 * q, 4), vT + 1, 1024 * q))
        return o
    def addpart():
        return ["    v_add_f32 v%d, v%d, v%d" % (vAcc + r, vAcc + r, vAcc + 32 + r) for r in range(32)]
    vP = vWraw
    vAd = vWraw + 16
    o = gemm(False) + ST(5); a = o.append
    a("    s_lshl_b32 s%d, s%d, 7" % (sT + 4, sKh))
    a("    v_lshl_add_u32 v%d, v%d, 2, s%d" % (vT, vN16, sT + 4))
    for rr in range(2): a("    ds_read_b32 v%d, v%d offset:%d" % (vT + 4 + rr, vT, L_RS + 64 * rr))
    def scale_pack_qk(rr):
        r_ = []
        pk = vP + 8 * rr
        for q in range(16): r_.append("    v_mul_f32 v%d, v%d, v%d" % (vAcc + 16 * rr + q, vAcc + 16 * rr + q, vT + 4 + rr))
        for r in range(4):
            r_.append(cvt(pk + 2 * r, vAcc + 16 * rr + r, vAcc + 16 * rr + 4 + r))
            r_.append(cvt(pk + 2 * r + 1, vAcc + 16 * rr + 8 + r, vAcc + 16 * rr + 12 + r))
        return r_, pk
    a("    s_cmp_ge_u32 s%d, 10" % sWi)
    a("    s_cselect_b32 s%d, 10, 0" % (sT + 4))
    a("    s_cselect_b32 s%d, 2, 1" % (sT + 2))
    a("    s_cselect_b32 s%d, %d, %d" % (sT + 3, WS_KV, WS_Q))
    a("    s_cselect_b32 s%d, 1.0, 0x%x" % (sT + 1, f32bits(QSCALE)))
    a("    s_mul_i32 s%d, s%d, %d" % (sT + 5, sT + 2, Q_HEAD))
    a("    s_mul_i32 s%d, s%d, %d" % (sT + 2, sT + 2, Q_REC))
    a("    s_sub_u32 s%d, s%d, s%d" % (sT + 4, sWi, sT + 4))
    a("    s_lshl_b32 s%d, s%d, 4" % (sT + 4, sT + 4))
    a("    v_lshl_add_u32 v%d, v%d, 2, s%d" % (vT, vG, sT + 4))
    for r in range(4):
        a("    v_add_u32 v%d, %d, v%d" % (vT + 1, r, vT))
        a("    v_mul_u32_u24 v%d, 205, v%d" % (vT + 2, vT + 1))
        a("    v_lshrrev_b32 v%d, 10, v%d" % (vT + 2, vT + 2))
        a("    v_mul_u32_u24 v%d, 5, v%d" % (vT + 3, vT + 2))
        a("    v_sub_u32 v%d, v%d, v%d" % (vT + 3, vT + 1, vT + 3))
        a("    v_mul_lo_u32 v%d, v%d, s%d" % (vT + 2, vT + 2, sT + 5))
        a("    v_lshrrev_b32 v%d, 1, v%d" % (vT + 8, vT + 3))
        a("    v_lshlrev_b32 v%d, 9, v%d" % (vT + 8, vT + 8))
        a("    v_and_b32 v%d, 1, v%d" % (vT + 9, vT + 3))
        a("    v_lshl_add_u32 v%d, v%d, 3, v%d" % (vT + 8, vT + 9, vT + 8))
        a("    v_add_u32 v%d, v%d, v%d" % (vT + 2, vT + 2, vT + 8))
        a("    v_cmp_eq_u32 vcc, 4, v%d" % (vT + 3))
        a("    v_mov_b32 v%d, 16" % (vT + 9))
        a("    v_cndmask_b32 v%d, v%d, 8, vcc" % (vT + 9, vT + 9))
        a("    v_mul_u32_u24 v%d, v%d, v%d" % (vT + 8, vT + 9, vN16))
        a("    v_add_u32 v%d, v%d, v%d" % (vAd + 2 * r, vT + 2, vT + 8))
        a("    v_lshl_add_u32 v%d, v%d, 4, v%d" % (vAd + 2 * r + 1, vT + 9, vAd + 2 * r))
    a("    s_lshl_b32 s%d, s%d, 1" % (sT + 4, sRB))
    a("    s_add_u32 s%d, s%d, s%d                      ; key tile" % (sT + 4, sT + 4, sKh))
    a("    s_mul_i32 s%d, s%d, s%d" % (sT + 4, sT + 4, sT + 2))
    a("    s_add_u32 s%d, s%d, s%d" % (sT + 4, sT + 4, sT + 3))
    a("    s_waitcnt lgkmcnt(0)")
    o += addpart()
    for rr in range(2): a("    v_mul_f32 v%d, s%d, v%d" % (vT + 4 + rr, sT + 1, vT + 4 + rr))
    for rr in range(2):
        r_, pk = scale_pack_qk(rr); o += r_
        for r in range(4):
            a("    buffer_store_dwordx2 %s, v%d, %s, s%d offen" % (V(pk + 2 * r, 2), vAd + 2 * r + rr, S(sWS, 4), sT + 4))
    o += ST(6) + FL()
    a("    s_endpgm")
    code += autonop(o)
    o = ["LK1_gemmV:"] + gemm(True) + ST(5); a = o.append
    a("    s_lshl_b32 s%d, s%d, 7" % (sT + 4, sKh))
    a("    v_lshl_add_u32 v%d, v%d, 4, s%d" % (vT, vG, sT + 4))
    for rr in range(2): a("    ds_read_b128 %s, v%d offset:%d" % (V(vAd + 4 * rr, 4), vT, L_RS + 64 * rr))
    a("    s_sub_u32 s%d, s%d, 20" % (sT + 4, sWi))
    a("    s_lshl_b32 s%d, s%d, 4" % (sT + 4, sT + 4))
    a("    v_add_u32 v%d, s%d, v%d" % (vT, sT + 4, vN16))
    a("    v_mul_u32_u24 v%d, 205, v%d" % (vT + 2, vT))
    a("    v_lshrrev_b32 v%d, 10, v%d" % (vT + 2, vT + 2))
    a("    v_mul_u32_u24 v%d, 5, v%d" % (vT + 3, vT + 2))
    a("    v_sub_u32 v%d, v%d, v%d" % (vT + 3, vT, vT + 3))
    a("    s_mov_b32 s%d, %d" % (sT + 5, KV_HEAD))
    a("    v_mul_lo_u32 v%d, v%d, s%d" % (vT + 2, vT + 2, sT + 5))
    a("    v_lshl_add_u32 v%d, v%d, 6, v%d" % (vT + 2, vT + 3, vT + 2))
    a("    v_and_b32 v%d, 1, v%d" % (vT + 4, vG))
    a("    v_mul_u32_u24 v%d, 320, v%d" % (vT + 4, vT + 4))
    a("    v_add_u32 v%d, v%d, v%d" % (vT + 2, vT + 2, vT + 4))
    a("    v_lshrrev_b32 v%d, 1, v%d" % (vT + 4, vG))
    a("    v_lshl_add_u32 v%d, v%d, 4, v%d" % (vT + 2, vT + 4, vT + 2))
    a("    s_lshl_b32 s%d, s%d, 1" % (sT + 4, sRB))
    a("    s_add_u32 s%d, s%d, s%d" % (sT + 4, sT + 4, sKh))
    a("    s_mul_i32 s%d, s%d, %d" % (sT + 4, sT + 4, KV_REC))
    a("    s_add_u32 s%d, s%d, %d" % (sT + 4, sT + 4, WS_KV + 1280))
    a("    s_waitcnt lgkmcnt(0)")
    o += addpart()
    for rr in range(2):
        pk = vP + 8 * rr
        for t in range(4):
            acc = vAcc + 16 * rr + 4 * t
            for r in range(4): a("    v_mul_f32 v%d, v%d, v%d" % (acc + r, acc + r, vAd + 4 * rr + r))
            o.append(cvt(pk + 2 * t, acc, acc + 1))
            o.append(cvt(pk + 2 * t + 1, acc + 2, acc + 3))
        for tp in range(2):
            a("    v_permlane32_swap_b32 v%d, v%d" % (pk + 4 * tp, pk + 4 * tp + 2))
            a("    v_permlane32_swap_b32 v%d, v%d" % (pk + 4 * tp + 1, pk + 4 * tp + 3))
            a("    buffer_store_dwordx4 %s, v%d, %s, s%d offen offset:%d" % (V(pk + 4 * tp, 4), vT + 2, S(sWS, 4), sT + 4, rr * 640 + 32 * tp))
    o += ST(6) + FL()
    a("    s_endpgm")
    code += autonop(o)
    o = ["LK1_xn:"]; a = o.append
    vWR = 60; X = 40; vA1, vA2, vA3 = 120, 122, 124; vDD = 100
    a("    s_waitcnt vmcnt(0)")
    a("    v_lshlrev_b32 v%d, 4, v%d" % (vT, vN16))
    for j in range(5):
        a("    buffer_load_dwordx4 %s, v%d, %s, 0 offen offset:%d" % (V(vWR + 4 * j, 4), vT, S(sWr, 4), 256 * j))
    a("    s_sub_u32 s%d, s%d, 30" % (sT + 4, sWi))
    a("    s_lshl_b32 s%d, s%d, 1" % (sT + 4, sT + 4))
    a("    s_add_u32 s%d, s%d, s%d" % (sT + 4, sT + 4, sKh))
    a("    s_lshl_b32 s%d, s%d, 4                      ; first local row" % (sT + 4, sT + 4))
    a("    s_sub_i32 s%d, s%d, s%d                     ; delta rows" % (sT + 4, sT + 4, sT + 1))
    a("    s_mul_i32 s%d, s%d, %d" % (sT + 5, sT + 4, LDS_ROW))
    for j in range(5): a("    v_add_u32 v%d, s%d, v%d" % (vLw + j, sT + 5, vLw + j))
    a("    s_mul_i32 s%d, s%d, %d" % (sT + 5, sT + 4, ROWB))
    a("    v_add_u32 v%d, s%d, v%d" % (vXoff, sT + 5, vXoff))
    a("    s_lshl_b32 s%d, s%d, 2" % (sT + 5, sT + 4))
    a("    v_add_u32 v%d, s%d, v%d" % (vT + 11, sT + 5, vT + 11))
    a("    s_lshl_b32 s%d, s%d, 8" % (sT + 5, sRB))
    a("    s_add_u32 s%d, s%d, %d" % (sT + 5, sT + 5, WS_R))
    a("    s_mov_b32 s%d, %d" % (sT + 4, WS_XN))
    a("    s_mov_b32 s%d, 4" % sCnt)
    a("    v_mov_b32 v126, 0")
    a("    v_mov_b32 v127, 0")
    a("    s_lshl_b32 s42, s%d, 6" % sRB)
    a("    s_sub_u32 s42, 2047, s42")
    a("LK1_xn_loop:")
    a("    ds_read_b32 v%d, v%d offset:%d" % (vT + 3, vT + 11, L_RS))
    for j in range(5): a("    ds_read_b128 %s, v%d" % (V(X + 4 * j, 4), vLw + j))
    a("    s_waitcnt lgkmcnt(5)")
    o.append(cvt(vT + 4, "0", vT + 3))
    a("    v_sub_f32 v%d, v%d, v%d" % (vT + 3, vT + 3, vT + 4))
    o.append(cvt(vT + 5, "0", vT + 3))
    a("    v_sub_f32 v%d, v%d, v%d" % (vT + 3, vT + 3, vT + 5))
    o.append(cvt(vT + 6, "0", vT + 3))
    for reg, src in ((vA1, vT + 4), (vA2, vT + 5), (vA3, vT + 6)):
        a("    v_lshrrev_b32 v%d, 16, v%d" % (src, src))
        a("    v_lshlrev_b32 v%d, v%d, v%d" % (src, vT + 8, src))
        a("    v_cndmask_b32 v%d, 0, v%d, s[54:55]" % (reg, src))
        a("    v_cndmask_b32 v%d, v%d, 0, s[54:55]" % (reg + 1, src))
    a("    s_waitcnt lgkmcnt(0)")
    def D(i): return vDD + 4 * (i & 3)
    for i in range(10 + 2):
        s3 = [mfma4(D(i), vA1, X + 2 * i, "0"), mfma4(D(i), vA2, X + 2 * i, D(i)), mfma4(D(i), vA3, X + 2 * i, D(i))] if i < 10 else []
        s4 = [cvt(X + 2 * (i - 2), D(i - 2), D(i - 2) + 1), cvt(X + 2 * (i - 2) + 1, D(i - 2) + 2, D(i - 2) + 3)] if i >= 2 else []
        for q in range(3):
            if q < len(s3): o.append(s3[q])
            if q < len(s4): o.append(s4[q])
    for j in range(5):
        a("    buffer_store_dwordx4 %s, v%d, %s, s%d offen offset:%d" % (V(X + 4 * j, 4), vXoff, S(sWS, 4), sT + 4, 256 * j))
    a("    v_mov_b32 v%d, 0" % vT); a("    v_mov_b32 v%d, 0" % (vT + 1))
    a("    s_waitcnt vmcnt(5)")
    for i in range(20):
        a("    v_dot2c_f32_bf16 v%d, v%d, v%d" % (vT + (i & 1), X + i, vWR + i))
    a("    s_nop 2")
    a("    v_add_f32 v%d, v%d, v%d" % (vT, vT, vT + 1))
    for sh in (8, 4, 2, 1):
        a("    v_add_f32_dpp v%d, v%d, v%d row_ror:%d row_mask:0xf bank_mask:0xf" % (vT, vT, vT, sh))
    o.append(cvt(vT, "0", vT))
    a("    s_mov_b64 exec, s[56:57]")
    a("    buffer_store_dword v%d, v%d, %s, s%d offen" % (vT, vT + 11, S(sWS, 4), sT + 5))
    a("    s_mov_b64 exec, -1")
    a("    v_ashrrev_i32 v%d, 31, v%d" % (vT + 1, vT))
    a("    v_or_b32 v%d, 0x80000000, v%d" % (vT + 1, vT + 1))
    a("    v_xor_b32 v%d, v%d, v%d" % (vT + 1, vT, vT + 1))
    a("    v_and_b32 v%d, 0xffff0000, v%d" % (vT + 1, vT + 1))
    a("    v_lshrrev_b32 v%d, 2, v%d" % (vT + 2, vT + 11))
    a("    v_sub_u32 v%d, s42, v%d" % (vT + 2, vT + 2))
    a("    v_or_b32 v%d, v%d, v%d" % (vT + 1, vT + 1, vT + 2))
    a("    v_med3_u32 v127, v126, v127, v%d" % (vT + 1))
    a("    v_max_u32 v126, v126, v%d" % (vT + 1))
    for j in range(5): a("    v_add_u32 v%d, %d, v%d" % (vLw + j, 4 * LDS_ROW, vLw + j))
    a("    v_add_u32 v%d, %d, v%d" % (vXoff, 4 * ROWB, vXoff))
    a("    v_add_u32 v%d, 16, v%d" % (vT + 11, vT + 11))
    a("    s_sub_u32 s%d, s%d, 1" % (sCnt, sCnt))
    a("    s_cmp_lg_u32 s%d, 0" % sCnt)
    a("    s_nop 3")
    a("    s_cbranch_scc1 LK1_xn_loop")
    for q in range(4):
        a("    v_readlane_b32 s%d, v126, %d" % (60 - 16 + 2 * q + 16, 16 * q) if False else "    v_readlane_b32 s%d, v126, %d" % (20 + 2 * q if q < 2 else 24 + 2 * (q - 2), 16 * q))
        a("    v_readlane_b32 s%d, v127, %d" % (21 + 2 * q if q < 2 else 25 + 2 * (q - 2), 16 * q))
    a("    s_nop 3")
    def merge(a1, a2, b1, b2):
        a("    s_min_u32 s42, s%d, s%d" % (a1, b1))
        a("    s_max_u32 s%d, s%d, s%d" % (a1, a1, b1))
        a("    s_max_u32 s%d, s%d, s%d" % (a2, a2, b2))
        a("    s_max_u32 s%d, s%d, s42" % (a2, a2))
    merge(20, 21, 22, 23); merge(24, 25, 26, 27); merge(20, 21, 24, 25)
    a("    s_sub_u32 s24, s%d, 30" % sWi)
    a("    s_lshl_b32 s24, s24, 1")
    a("    s_add_u32 s24, s24, s%d" % sKh)
    a("    s_lshl_b32 s25, s%d, 2" % sRB)
    a("    s_add_u32 s24, s24, s25")
    a("    s_lshl_b32 s24, s24, 3")
    a("    s_add_u32 s24, s24, %d" % WS_KEY)
    a("    v_mov_b32 v126, s20")
    a("    v_mov_b32 v127, s21")
    a("    v_mov_b32 v125, s24")
    a("    s_mov_b64 exec, 1")
    a("    buffer_store_dwordx2 v[126:127], v125, %s, 0 offen" % S(sWS, 4))
    a("    s_mov_b64 exec, -1")
    o += ST(5) + ST(6) + FL()
    a("LK1_exit:")
    a("    s_endpgm")
    code += autonop(o)
    return code
```
